```python
import torch

def _softmax(x, axis=-1):
    return torch.softmax(x, dim=axis)
def _gelu(x):
    return torch.nn.functional.gelu(x, approximate="tanh")
def _silu(x):
    return torch.nn.functional.silu(x)
def _sigmoid(x):
    return torch.sigmoid(x)
def _layernorm(x, axis=-1, eps=1e-5):
    m = x.mean(dim=axis, keepdim=True)
    v = x.var(dim=axis, keepdim=True, unbiased=False)
    return (x - m) / torch.sqrt(v + eps)
def _scatter_add(tgt, idx, src, axis=0):
    return tgt.clone().index_add_(axis, idx, src)
def _segment_sum(src, seg, n):
    out = torch.zeros((n,) + src.shape[1:], dtype=src.dtype)
    return out.index_add_(0, seg, src)
def _pad(x, pw):
    flat = tuple(v for pair in reversed(pw) for v in pair)
    return torch.nn.functional.pad(x, flat)

kernel_name = 'sequential_preLN__linear_attn_block__geglu_ffn__prompt'

def setup_inputs():

    _w = (lambda a: (lambda t: t.to(torch.bfloat16) if t.is_floating_point() else t)(torch.as_tensor(a)))
    def _A_setup():
        B, S, D = 1, 2048, 512
        return {
            "x": _w((lambda *s: torch.randn(*s, dtype=torch.bfloat16) * 0.05)(B, S, D)),
            "wqkv": _w((lambda *s: torch.randn(*s, dtype=torch.bfloat16) * 0.05)(D, 3 * D)),
            "wo": _w((lambda *s: torch.randn(*s, dtype=torch.bfloat16) * 0.05)(D, D)),
        }
    _A_in = _A_setup()

    def _B_setup():
        B, S, D, F = 1, 2048, 512, 1376
        return {
            "x": _w((lambda *s: torch.randn(*s, dtype=torch.bfloat16) * 0.05)(B, S, D)),
            "w_gate": _w((lambda *s: torch.randn(*s, dtype=torch.bfloat16) * 0.05)(D, F)),
            "w_up": _w((lambda *s: torch.randn(*s, dtype=torch.bfloat16) * 0.05)(D, F)),
            "w_down": _w((lambda *s: torch.randn(*s, dtype=torch.bfloat16) * 0.05)(F, D)),
        }
    _B_in = _B_setup()

    return {
        "A_x": _A_in["x"],
        "A_wqkv": _A_in["wqkv"],
        "A_wo": _A_in["wo"],
        "B_x": _B_in["x"],
        "B_w_gate": _B_in["w_gate"],
        "B_w_up": _B_in["w_up"],
        "B_w_down": _B_in["w_down"],
    }

def reference(A_x, A_wqkv, A_wo, B_x, B_w_gate, B_w_up, B_w_down):
    def _A_ref(x, wqkv, wo):
        B, S, D = x.shape
        H = 32; Dh = D // H
        qkv = (lambda x, *d: x.permute(*d))((x @ wqkv).reshape(B, S, 3, H, Dh), 2, 0, 3, 1, 4)
        q, k, v = qkv[0], qkv[1], qkv[2]
        phi = lambda t: torch.where(t > 0, t + 1, torch.exp(t)) + 1e-6
        pq, pk = phi(q), phi(k)
        kv = torch.einsum("bhsd,bhse->bhde", pk, v)
        z = torch.einsum("bhsd->bhd", pk)
        num = torch.einsum("bhqd,bhde->bhqe", pq, kv)
        den = torch.einsum("bhqd,bhd->bhq", pq, z)[..., None] + 1e-6
        o = num / den
        return (lambda x, *d: x.permute(*d))(o, 0, 2, 1, 3).reshape(B, S, D) @ wo

    def _B_ref(x, w_gate, w_up, w_down):
        return (_gelu(x @ w_gate) * (x @ w_up)) @ w_down

    x = A_x
    h = x + _A_ref(_layernorm(x, axis=-1), A_wqkv, A_wo)
    h2 = h + _B_ref(_layernorm(h, axis=-1), B_w_gate, B_w_up, B_w_down)
    return h2
```

```python
import sys, struct
from kasm import *
NAME='sequential_preLN__linear_attn_block__geglu_ffn__prompt'
KN=NAME+'_kernel'
def f2u(x): return struct.unpack('<I',struct.pack('<f',x))[0]
WS_EPOCH=0x0
WS_ZF   =0x1000
WS_F1   =0x2000
WS_F2   =0x3000
WS_XC   =0x6000
WS_F3   =0x8000
WS_KV   =0x40000
WS_STAT =0x80000
WS_O    =0x100000
WS_H    =0x340000
WS_A    =0x580000
WS_WGU  =0xB00000
WS_WD   =0xE00000
WS_STAMP=0x1000000
WS_SIZE =0x1100000
OOB=0x7F000000
XNP=1040
L_RING=66560
L_P0=L_RING+65536
L_XR=L_P0+12288
L_MEAN=L_P0+24576
L_WO=0
L_O=65536
L_W=[131072-0,0,32768,65536]
LDS=163840
L_W=[LDS-32768+0,0,32768,65536]
SPIN=400000
SX,SW,SWO,SG,SU,SD,SO,SWS=4,8,12,16,20,24,28,32
sW,sX,sLOC,sHG,sQ,sTB,sN0,sN1=36,37,38,39,40,41,42,43
sC0=44; sTT=45; sHP=46; sW11=47
sSPIN=68; sMASK=69
sWK=8*0+84
sXK=92
STAMP0=70
def srd(k,d,lo,nbytes):
    k.e('s_mov_b32 s%d, s%d',d,lo); k.e('s_and_b32 s%d, s%d, 0xffff',d+1,lo+1); k.e('s_mov_b32 s%d, 0x%x',d+2,nbytes); k.e('s_mov_b32 s%d, 0x00020000',d+3)
def R(b,n=4,p='v'): return '%s[%d:%d]'%(p,b,b+n-1)
vL,vL16,vZ,vN=1,2,3,4
vST=255
vFP,vFG=249,250
class G:
    def __init__(self, stamps=False, stop=None, opt=None):
        self.k=K(); self.stamps=stamps; self.stop=stop; self.nst=0; self.names=[]; self.opt=opt or {}; self.pst=[]
    def stamp(self,name):
        if not self.stamps: return
        k=self.k
        if len(self.pst)==7: self.flush_stamps()
        i=len(self.pst); k.e('s_memrealtime s[%d:%d]',STAMP0+2*i,STAMP0+2*i+1); self.pst.append(self.nst); self.nst+=1; self.names.append(name)
    def flush_stamps(self):
        k=self.k
        if not self.pst: return
        k.e('s_waitcnt lgkmcnt(0)')
        for i,n in enumerate(self.pst): k.e('v_writelane_b32 v%d, s%d, %d',vST,STAMP0+2*i,n)
        self.pst=[]
    def mfma(self,d,a,b,c=None):
        self.k.e('v_mfma_f32_32x32x16_bf16 %s, %s, %s, %s',d,a,b,c if c is not None else d)
    def m0(self,sr,imm):
        if sr is None: self.k.e('s_mov_b32 m0, %d',imm)
        else: self.k.e('s_add_u32 m0, s%d, %d',sr,imm)
    def dma(self,voff,srd_,soff,flags='',off=0):
        return self.k.e('buffer_load_dwordx4 v%d, s[%d:%d], s%d offen %s%s lds',voff,srd_,srd_+3,soff,('offset:%d '%off) if off else '',flags)
    def wsld(self,dst,voff,soff,off=0,w=4,flags='sc1'):
        return self.k.e('buffer_load_dword%s %s, v%d, s[%d:%d], s%d offen %s%s',{1:'',2:'x2',4:'x4'}[w],dst,voff,SWS,SWS+3,soff,('offset:%d '%off) if off else '',flags)
    def wsst(self,src,voff,soff,off=0,w=4,flags='sc1'):
        return self.k.e('buffer_store_%s %s, v%d, s[%d:%d], s%d offen %s%s',{0:'short',1:'dword',2:'dwordx2',4:'dwordx4'}[w],src,voff,SWS,SWS+3,soff,('offset:%d '%off) if off else '',flags)
    def poll(self,vaddr,sbase,vt):
        k=self.k; e=k.e
        e('s_mov_b32 s%d, 0',sSPIN)
        p=k.newlabel('poll'); k.label(p)
        self.wsld(R(vt,2),vaddr,sbase,w=2)
        e('s_add_u32 s%d, s%d, 1',sSPIN,sSPIN); e('s_cmp_gt_u32 s%d, %d',sSPIN,SPIN); e('s_cbranch_scc1 L_end')
        e('s_waitcnt vmcnt(0)')
        e('v_cmp_ne_u64 vcc, %s, %s',R(vt,2),R(vN,2))
        e('s_cbranch_vccnz %s',p)
    def flag(self,soff):
        k=self.k; e=k.e
        a=k.newlabel('fg'); b=k.newlabel('fe')
        e('s_mov_b64 exec, 1')
        e('s_cmp_eq_u32 s%d, 0',sLOC); e('s_cbranch_scc1 %s',a)
        self.wsst(R(vN,2),vZ,soff,w=2,flags='')
        e('s_branch %s',b)
        k.label(a); k.vm.pop()
        t=self.wsst(R(vN,2),vZ,soff,w=2)
        k.label(b)
        e('s_mov_b64 exec, -1')
        return t
    def pipe(self,n,L,reads,mf,bar=None,fill=None,wait_every=1):
        k=self.k; tok={}
        for j in range(min(L,n)):
            if bar: bar(j)
            tok[j]=reads(j)
        for j in range(n):
            if j%wait_every==0: k.waitlg(tok[min(n-1,j+wait_every-1)])
            mf(j)
            if j+L<n:
                if bar: bar(j+L)
                tok[j+L]=reads(j+L)
            if fill: fill(j)
    def flag2(self,soff,off=0):
        self.wsst(R(vN,2),vFP,soff,off=off,w=2,flags='')
        return self.wsst(R(vN,2),vFG,soff,off=off,w=2)
    def bfround(self,v,t):
        e=self.k.e
        e('v_cvt_pk_bf16_f32 v%d, v%d, v%d',t,v,v); e('v_lshlrev_b32 v%d, 16, v%d',v,t)
    def build(self):
        k=self.k; e=k.e
        k.raw('.text\n.globl %s\n.p2align 8\n.type %s,@function\n%s:'%(KN,KN,KN))
        self.stamp('start')
        e('s_load_dwordx4 s[48:51], s[0:1], 0')
        e('s_load_dwordx2 s[64:65], s[0:1], 72')
        e('s_load_dwordx2 s[52:53], s[0:1], 16')
        e('s_load_dwordx4 s[56:59], s[0:1], 32')
        e('s_load_dwordx4 s[60:63], s[0:1], 48')
        e('s_cmp_ge_u32 s2, 256'); e('s_cbranch_scc1 L_end')
        e('v_lshrrev_b32 v6, 6, v0'); e('v_and_b32 v%d, 63, v0',vL); e('v_readfirstlane_b32 s%d, v6',sW)
        e('s_and_b32 s%d, s2, 7',sX); e('s_lshr_b32 s66, s2, 3')
        e('s_and_b32 s%d, s66, 7',sHG); e('s_lshr_b32 s%d, s66, 3',sQ)
        e('s_lshl_b32 s%d, s%d, 2',sTB,sX); e('s_add_u32 s%d, s%d, s%d',sTB,sTB,sQ)
        self.p1_start()
        self.p1()
        if self.stop!='p1':
            self.p2()
            if self.stop!='p2':
                self.p3()
                if self.stop!='p3': self.p4()
        else:
            self.poll_o(); self.epoch()
        self.stamp('end')
        if self.stamps:
            self.flush_stamps()
            e('s_waitcnt vmcnt(0)')
            e('s_lshl_b32 s48, s2, 2'); e('s_add_u32 s48, s48, s%d',sW); e('s_lshl_b32 s48, s48, 7'); e('s_add_u32 s48, s48, %d',WS_STAMP)
            e('v_lshlrev_b32 v6, 2, v%d',vL); e('s_mov_b64 exec, 0xffffffff')
            self.wsst('v%d'%vST,6,48,w=1,flags='')
        k.label('L_end'); e('s_endpgm')
        hdr='; @launch grid=(256,1,1) block=(256,1,1) lds=%d\n.amdgcn_target "amdgcn-amd-amdhsa--gfx950"\n'%LDS
        desc='''.section .rodata,"a"
.p2align 6
.amdhsa_kernel %s
  .amdhsa_next_free_vgpr 512
  .amdhsa_next_free_sgpr 102
  .amdhsa_accum_offset 256
  .amdhsa_group_segment_fixed_size 0
  .amdhsa_kernarg_size 80
  .amdhsa_user_sgpr_count 2
  .amdhsa_user_sgpr_kernarg_segment_ptr 1
  .amdhsa_system_sgpr_workgroup_id_x 1
.end_amdhsa_kernel
'''%KN
        return hdr+k.text()+desc
    def p1_start(self):
        k=self.k; e=k.e
        self.tx={}; self.tw={}
        e('v_lshrrev_b32 v24, 4, v%d',vL); e('v_and_b32 v25, 15, v%d',vL); e('v_lshlrev_b32 v25, 4, v25')
        e('v_lshl_add_u32 v6, v24, 10, v25')
        e('s_lshl_b32 s54, s%d, 2',sTB); e('s_add_u32 s54, s54, s%d',sW); e('s_lshl_b32 s54, s54, 14')
        for g in range(4):
            e('s_add_u32 s66, s%d, %d',sHG,g); e('s_and_b32 s%d, s66, 3',sXK+4+g)
        e('s_lshl_b32 s66, s%d, 12',sXK+4); e('s_add_u32 s55, s54, s66')
        e('v_and_b32 v26, 1, v24'); e('v_lshlrev_b32 v26, 2, v26'); e('v_and_b32 v27, 7, v%d',vL); e('v_xor_b32 v27, v27, v26'); e('v_lshlrev_b32 v27, 4, v27')
        e('v_lshrrev_b32 v26, 3, v%d',vL)
        e('v_mul_u32_u24 v16, 3072, v26'); e('v_add_u32 v16, v16, v27')
        e('s_mul_i32 s66, s%d, %d',sW,16*3072); e('s_lshl_b32 s67, s%d, 7',sHG); e('s_add_u32 s66, s66, s67')
        e('v_add_u32 v16, s66, v16')
        e('s_lshl_b32 s%d, s%d, 1',sC0,sQ); e('s_and_b32 s66, s%d, 1',sX); e('s_add_u32 s%d, s%d, s66',sC0,sC0)
        e('s_mul_i32 s%d, s%d, %d',sWK,sC0,64*3072)
        e('s_lshl_b32 s%d, s%d, 11',sW11,sW)
        e('v_add_u32 v8, 1024, v16'); e('v_add_u32 v9, %d, v16',1024+8*3072); e('v_add_u32 v14, 2048, v16'); e('v_add_u32 v15, %d, v16',2048+8*3072)
        e('s_waitcnt lgkmcnt(0)')
        e('s_load_dwordx2 s[%d:%d], s[64:65], %d',sN0,sN1,WS_EPOCH)
        srd(k,SX,48,2048*1024)
        for i in range(4): self.tx[0]=e('buffer_load_dwordx4 %s, v6, s[%d:%d], s55 offen offset:%d',R(64+4*i),SX,SX+3,256*i)
        srd(k,SW,50,512*3072)
        for f in self.wdma(0): f[0](); e('s_nop 0'); f[1]()
        for g in (1,2,3):
            e('s_lshl_b32 s66, s%d, 12',sXK+4+g); e('s_add_u32 s55, s54, s66')
            for i in range(4): self.tx[g]=e('buffer_load_dwordx4 %s, v6, s[%d:%d], s55 offen offset:%d',R(64+16*g+4*i),SX,SX+3,256*i)
            if g==1: self.consts()
        self.stamp('issued')
    def consts(self):
        k=self.k; e=k.e
        srd(k,SWS,64,WS_SIZE); srd(k,SWO,52,512*1024); srd(k,SG,56,512*2752); srd(k,SU,58,512*2752); srd(k,SD,60,1376*1024); srd(k,SO,62,2048*1024)
        e('v_lshlrev_b32 v%d, 4, v%d',vL16,vL); e('v_mov_b32 v%d, 0',vZ)
        e('s_and_b32 s%d, s%d, 1',sTT,sW); e('s_lshr_b32 s%d, s%d, 1',sHP,sW)
        e('s_mov_b32 s%d, 0xffff0000',sMASK)
        e('v_add_u32 v17, %d, v16',8*3072)
        e('v_lshl_add_u32 v11, v26, 10, v27')
        e('v_mul_u32_u24 v12, 2752, v26'); e('v_add_u32 v12, v12, v27')
        e('s_mul_i32 s66, s%d, %d',sTB,16*3072); e('s_mul_i32 s67, s%d, 6144',sHG); e('s_add_u32 s66, s66, s67'); e('s_mul_i32 s67, s%d, 1536',sW); e('s_add_u32 s66, s66, s67'); e('s_add_u32 s66, s66, %d',WS_KV)
        e('s_cmp_lt_u32 s%d, 2',sTB); e('s_cselect_b32 s66, s66, 0x%x',OOB)
        for i in range(28,32): e('v_mov_b32 v%d, 0',i)
        e('v_lshlrev_b32 v23, 3, v%d',vL)
        self.wsst(R(28),vL16,66); self.tzero=self.wsst(R(28,2),23,66,off=1024,w=2)
        e('v_mul_u32_u24 v7, %d, v24',XNP); e('v_add_u32 v7, v7, v25')
        e('s_mul_i32 s67, s%d, %d',sW,16*XNP); e('v_add_u32 v7, s67, v7')
        for g in (1,2,3,0):
            e('s_mul_i32 s66, s%d, %d',sXK+4+g,4*XNP); e('v_add_u32 v%d, s66, v7',7 if g==0 else 39+g)
        e('s_lshl_b32 s66, s%d, 6',sW); e('s_add_u32 s66, s66, %d',L_MEAN); e('v_lshl_add_u32 v43, v24, 2, s66')
        for g in range(4): e('s_lshl_b32 s%d, s%d, 4',56+g,sXK+4+g)
        for c in range(1,8):
            e('s_add_u32 s66, s%d, %d',sC0,c); e('s_and_b32 s66, s66, 7'); e('s_mul_i32 s%d, s66, %d',sWK+c,64*3072)
        e('v_bfe_u32 v24, v%d, 2, 2',vL); e('v_bfe_u32 v25, v%d, 1, 1',vL); e('v_bfe_u32 v26, v%d, 4, 1',vL)
        e('v_lshl_add_u32 v25, v26, 1, v25')
        e('v_bfe_u32 v26, v%d, 3, 1',vL); e('v_lshlrev_b32 v26, 2, v26')
        e('v_lshlrev_b32 v24, 7, v24'); e('v_and_b32 v27, 1, v%d',vL); e('v_lshl_add_u32 v24, v27, 3, v24')
        e('v_lshrrev_b32 v27, 5, v%d',vL)
        e('s_lshl_b32 s66, s%d, 2',sHP)
        e('v_add_u32 v28, s66, v25'); e('v_xor_b32 v28, v28, v26'); e('v_lshl_add_u32 v28, v28, 4, v24')
        e('v_lshl_add_u32 v18, v27, 10, v28'); e('v_add_u32 v18, %d, v18',L_RING)
        e('v_lshl_add_u32 v13, v27, 9, v28')
        e('v_bfe_u32 v29, v%d, 1, 1',vL); e('v_xor_b32 v29, v29, v26'); e('v_lshl_add_u32 v29, v29, 4, v24'); e('v_lshl_add_u32 v29, v27, 9, v29')
        e('v_bfe_u32 v20, v%d, 4, 1',vL); e('v_lshl_add_u32 v20, v20, 11, v29')
        e('v_xor_b32 v21, v25, v26'); e('v_lshl_add_u32 v21, v21, 4, v24'); e('v_lshl_add_u32 v21, v27, 9, v21')
        e('s_mul_i32 s66, s%d, 6144',sW); e('s_add_u32 s66, s66, %d',L_P0)
        e('v_add_u32 v20, s66, v20'); e('v_add_u32 v21, s66, v21')
        e('v_and_b32 v28, 31, v%d',vL); e('s_lshl_b32 s66, s%d, 5',sTT); e('v_add_u32 v28, s66, v28')
        e('v_mul_u32_u24 v10, %d, v28',XNP); e('v_lshl_add_u32 v10, v27, 4, v10')
        e('v_bfe_u32 v29, v28, 1, 3'); e('s_lshl_b32 s66, s%d, 2',sHP); e('v_xor_b32 v29, s66, v29'); e('v_lshlrev_b32 v29, 4, v29')
        e('v_lshl_add_u32 v19, v28, 7, v29'); e('v_lshl_add_u32 v19, v27, 3, v19'); e('v_add_u32 v19, %d, v19',L_XR)
        e('v_lshl_add_u32 v44, v28, 2, 0'); e('v_add_u32 v44, %d, v44',L_MEAN)
        e('v_mov_b32 v22, 0x3f803f80')
        e('s_waitcnt lgkmcnt(0)')
        e('s_mul_i32 s%d, s%d, 1664525',sN0,sN0); e('s_add_u32 s%d, s%d, 1013904223',sN0,sN0)
        e('s_mul_i32 s%d, s%d, 22695477',sN1,sN1); e('s_add_u32 s%d, s%d, 0x3c6ef35f',sN1,sN1)
        e('v_mov_b32 v%d, s%d',vN,sN0); e('v_mov_b32 v%d, s%d',vN+1,sN1)
        e('s_getreg_b32 s%d, hwreg(HW_REG_XCC_ID, 0, 4)',sLOC)
        e('v_mov_b32 v28, s%d',sN0); e('v_mov_b32 v29, s%d',sN1); e('v_mov_b32 v30, s%d',sLOC)
        e('s_lshr_b32 s66, s2, 3'); e('s_lshl_b32 s67, s%d, 5',sX); e('s_add_u32 s66, s66, s67'); e('s_lshl_b32 s66, s66, 4'); e('s_add_u32 s66, s66, %d',WS_XC)
        e('s_cmp_eq_u32 s%d, 0',sW); e('s_cselect_b32 s66, s66, 0x%x',OOB)
        e('s_mov_b64 exec, 1'); self.wsst(R(28),vZ,66); e('s_mov_b64 exec, -1')
    def wdma(self,c):
        out=[]; slot=L_RING+(c%4)*16384
        for m in range(2):
            for h in range(2):
                v=[[8,9],[14,15]][m][h] if c<8 else [16,17][h]
                s=sWK+(c if c<8 else 2*(c-8)+m)
                def f0(m=m,h=h): self.m0(sW11,slot+m*8192+h*1024)
                def f1(v=v,s=s): self.tw[c]=self.dma(v,SW,s)
                out.append((f0,f1))
        return out
    def p0_issue(self):
        k=self.k; e=k.e
        e('s_lshl_b32 s60, s%d, 2',sHG); e('s_add_u32 s60, s60, s%d',sW)
        e('s_mul_i32 s61, s60, 96'); e('s_mul_i32 s62, s%d, %d',sTB,16*2752); e('s_add_u32 s61, s61, s62')
        e('s_cmp_lt_u32 s60, 29'); e('s_cselect_b32 s61, s61, 0x%x',OOB); e('s_add_u32 s62, s61, %d',8*2752)
        e('s_mul_i32 s63, s%d, 6144',sW)
        e('s_lshl_b32 s64, s2, 2'); e('s_add_u32 s64, s64, s%d',sW)
        e('s_lshr_b32 s65, s64, 3'); e('s_lshl_b32 s65, s65, 14'); e('s_and_b32 s66, s64, 7'); e('s_lshl_b32 s66, s66, 7'); e('s_add_u32 s65, s65, s66')
        e('s_cmp_lt_u32 s64, 688'); e('s_cselect_b32 s65, s65, 0x%x',OOB)
        e('s_lshl_b32 s52, s%d, 1',sTB); e('s_add_u32 s52, s52, s%d',sTT); e('s_lshl_b32 s53, s%d, 6',sHG); e('s_add_u32 s53, s53, s52'); e('s_lshl_b32 s53, s53, 10')
        e('s_lshr_b32 s67, s52, 5'); e('s_cmp_eq_u32 s67, s%d',sHP); e('s_cselect_b32 s53, s53, 0x%x',OOB)
        self.m0(63,L_P0); e('s_add_u32 s66, s65, 8192'); self.dma(12,SG,61,'nt')
        self.m0(63,L_P0+1024); self.twb=e('buffer_load_dwordx4 v[60:63], v%d, s[%d:%d], s53 offen',vL16,SWO,SWO+3); self.dma(12,SG,62,'nt')
        for (v,sr,so,l) in ((12,SU,61,2048),(12,SU,62,3072),(11,SD,65,4096),(11,SD,66,5120)):
            self.m0(63,L_P0+l); e('s_nop 0'); self.tp0=self.dma(v,sr,so,'nt')
    def p0_finish(self):
        k=self.k; e=k.e
        B=128
        e('v_xor_b32 v24, 32, v20'); e('v_xor_b32 v25, 64, v20'); e('v_xor_b32 v26, 64, v21')
        k.waitvm(self.tp0)
        for f in range(3):
            for t in range(2): e('ds_read_b64_tr_b16 %s, v%d offset:%d',R(B+4*f+2*t,2),[20,24,25][f],t*1024)
        for ct in range(2):
            for t in range(2): last=e('ds_read_b64_tr_b16 %s, v%d offset:%d',R(B+12+4*ct+2*t,2),26 if ct else 21,4096+t*1024)
        e('s_mul_i32 s61, s60, %d',3*32768); e('s_lshl_b32 s62, s%d, 10',sTB); e('s_add_u32 s61, s61, s62'); e('s_add_u32 s61, s61, %d',WS_WGU)
        e('s_cmp_lt_u32 s60, 29'); e('s_cselect_b32 s61, s61, 0x%x',OOB); e('s_add_u32 s62, s61, 32768'); e('s_add_u32 s63, s61, 65536')
        e('s_cmp_lt_u32 s60, 28'); e('s_cselect_b32 s63, s63, 0x%x',OOB)
        e('s_lshr_b32 s65, s64, 3'); e('s_and_b32 s66, s64, 7'); e('s_mul_i32 s66, s66, 172'); e('s_add_u32 s65, s65, s66'); e('s_lshl_b32 s65, s65, 10'); e('s_add_u32 s65, s65, %d',WS_WD)
        e('s_cmp_lt_u32 s64, 688'); e('s_cselect_b32 s65, s65, 0x%x',OOB); e('s_add_u32 s66, s65, %d',86*1024)
        e('v_dot2_f32_bf16 v45, v60, v22, 0'); e('v_dot2_f32_bf16 v46, v61, v22, 0'); e('v_dot2_f32_bf16 v45, v62, v22, v45'); e('v_dot2_f32_bf16 v46, v63, v22, v46')
        k.waitlg(last)
        for f in range(3): self.wsst(R(B+4*f),vL16,61+f)
        e('v_add_f32 v45, v45, v46')
        self.wsst(R(B+12),vL16,65); self.tp0st=self.wsst(R(B+16),vL16,66)
        for r in (8,4,2,1): e('v_add_f32_dpp v45, v45, v45 row_ror:%d row_mask:0xf bank_mask:0xf',r)
        e('v_mov_b32 v46, v45'); e('v_permlane16_swap_b32 v45, v46'); e('v_add_f32 v45, v45, v46')
        e('v_mov_b32 v46, v45'); e('v_permlane32_swap_b32 v45, v46'); e('v_add_f32 v45, v45, v46')
        e('v_mul_f32 v45, 0x%x, v45',f2u(1/512.))
    def ln(self,hooks):
        k=self.k; e=k.e
        for g in range(4):
            X=64+16*g; k.waitvm(self.tx[g])
            for j in range(16):
                s,q=(48+2*g,49+2*g) if j&1==0 else (24,25)
                if j<2:
                    e('v_dot2_f32_bf16 v%d, v%d, v22, 0',s,X+j); e('v_dot2_f32_bf16 v%d, v%d, v%d, 0',q,X+j,X+j)
                else:
                    e('v_dot2_f32_bf16 v%d, v%d, v22, v%d',s,X+j,s); e('v_dot2_f32_bf16 v%d, v%d, v%d, v%d',q,X+j,X+j,q)
            if g in hooks: hooks[g]()
            else: e('s_nop 1')
            e('v_pk_add_f32 %s, %s, v[24:25]',R(48+2*g,2),R(48+2*g,2))
        for r in (8,4,2,1):
            for j in range(8): e('v_add_f32_dpp v%d, v%d, v%d row_ror:%d row_mask:0xf bank_mask:0xf',48+j,48+j,48+j,r)
        e('v_mov_b32 v28, 0x%x',f2u(1/512.))
        for g in range(4): e('v_pk_mul_f32 %s, %s, v[28:29] op_sel_hi:[1,0]',R(48+2*g,2),R(48+2*g,2))
        S=[48,50,52,54]; Q=[49,51,53,55]
        for g in range(4): e('v_fma_f32 v%d, -v%d, v%d, v%d',Q[g],S[g],S[g],Q[g])
        for g in range(4):
            e('v_add_u32 v23, s%d, v43',56+g); e('ds_write_b32 v23, v%d',S[g])
        for g in range(4): e('v_max_f32 v%d, 0, v%d',Q[g],Q[g])
        for g in range(0,4,2): e('v_cvt_pk_bf16_f32 v%d, v%d, v%d',24+g//2,Q[g],Q[g+1])
        for g in range(0,4,2): e('v_lshlrev_b32 v%d, 16, v%d',Q[g],24+g//2); e('v_and_b32 v%d, s%d, v%d',Q[g+1],sMASK,24+g//2)
        for g in range(4): e('v_add_f32 v%d, 0x%x, v%d',Q[g],f2u(1e-5),Q[g])
        for g in range(0,4,2): e('v_cvt_pk_bf16_f32 v%d, v%d, v%d',24+g//2,Q[g],Q[g+1])
        for g in range(0,4,2): e('v_lshlrev_b32 v%d, 16, v%d',Q[g],24+g//2); e('v_and_b32 v%d, s%d, v%d',Q[g+1],sMASK,24+g//2)
        for g in range(4): e('v_sqrt_f32 v%d, v%d',Q[g],Q[g])
        for g in range(0,4,2): e('v_cvt_pk_bf16_f32 v%d, v%d, v%d',26+g//2,S[g],S[g+1])
        for g in range(0,4,2): e('v_cvt_pk_bf16_f32 v%d, v%d, v%d',24+g//2,Q[g],Q[g+1])
        for g in range(0,4,2): e('v_lshlrev_b32 v%d, 16, v%d',S[g],26+g//2); e('v_and_b32 v%d, s%d, v%d',S[g+1],sMASK,26+g//2)
        for g in range(0,4,2): e('v_lshlrev_b32 v%d, 16, v%d',Q[g],24+g//2); e('v_and_b32 v%d, s%d, v%d',Q[g+1],sMASK,24+g//2)
        for g in range(4): e('v_rcp_f32 v%d, v%d',Q[g],Q[g])
        e('s_nop 0')
        for g in range(4): e('v_mul_f32_e64 v%d, -v%d, v%d',S[g],S[g],Q[g])
        self.stamp('stats')
        for g in range(4):
            X=64+16*g
            for i in range(4):
                for j in range(4):
                    x=X+4*i+j; t=24+2*j
                    e('v_lshlrev_b32 v%d, 16, v%d',t,x); e('v_and_b32 v%d, s%d, v%d',t+1,sMASK,x)
                for j in range(4):
                    t=24+2*j
                    e('v_pk_fma_f32 %s, %s, %s, %s op_sel:[0,1,0] op_sel_hi:[1,1,0]',R(t,2),R(t,2),R(48+2*g,2),R(48+2*g,2))
                for j in range(4): e('v_cvt_pk_bf16_f32 v%d, v%d, v%d',X+4*i+j,24+2*j,25+2*j)
                e('ds_write_b128 v%d, %s offset:%d',7 if g==0 else 39+g,R(X+4*i),256*i)
            if 4+g in hooks: hooks[4+g]()
    def phi(self,src,n,dst,t):
        e=self.k.e
        e('v_mov_b32 v28, 0x%x',f2u(1.4426950408889634)); e('v_mov_b32 v30, 0x%x',f2u(1e-6))
        for j in range(0,n,2): e('v_pk_mul_f32 %s, %s, v[28:29] op_sel_hi:[1,0]',R(t+j,2),R(src+j,2))
        for j in range(n):
            e('v_exp_f32_e64 v%d, v%d clamp',t+j,t+j); e('v_max_f32 v%d, 0, v%d',src+j,src+j)
        for j in range(0,n,2): e('v_pk_add_f32 %s, %s, v[30:31] op_sel_hi:[1,0]',R(src+j,2),R(src+j,2))
        for j in range(0,n,2): e('v_pk_add_f32 %s, %s, %s',R(t+j,2),R(t+j,2),R(src+j,2))
        for j in range(0,n,2): e('v_cvt_pk_bf16_f32 v%d, v%d, v%d',dst+j//2,t+j,t+j+1)
    def p1(self):
        k=self.k; e=k.e; tw=self.tw
        def W(c):
            def f():
                for a,b in self.wdma(c): a(); e('s_nop 0'); b()
            return f
        def zf():
            k.waitvm(self.tzero)
            e('s_lshl_b32 s52, s%d, 1',sHG); e('s_add_u32 s52, s52, s%d',sTB); e('s_lshl_b32 s52, s52, 3'); e('s_add_u32 s52, s52, s%d',sW); e('s_lshl_b32 s52, s52, 3'); e('s_add_u32 s52, s52, %d',WS_ZF)
            e('s_cmp_lt_u32 s%d, 2',sTB); e('s_cselect_b32 s52, s52, 0x%x',OOB)
            e('s_mov_b64 exec, 1'); self.wsst(R(vN,2),vZ,52,w=2); e('s_mov_b64 exec, -1')
        def xk():
            for c in range(8):
                e('s_add_u32 s66, s%d, %d',sC0,c); e('s_and_b32 s66, s66, 7'); e('s_lshl_b32 s%d, s66, 7',sXK+c)
        if self.opt.get('nop0'):
            self.ln({0:W(1),1:W(2),2:lambda:(zf(),W(3)()), 4:xk})
            self.stamp('lndone'); self.tp0st=self.tzero
        else:
            pp=self.opt.get('p0at',0)
            hk={2:[zf],4:[xk],5:[W(1)],7:[W(2),W(3)]}
            hk.setdefault(pp,[]).append(self.p0_issue)
            if self.opt.get('w1at') is not None: hk[5]=[]; hk.setdefault(self.opt['w1at'],[]).append(W(1))
            self.ln({g:(lambda fs=fs:[f() for f in fs]) for g,fs in hk.items()})
            self.stamp('lndone')
            self.p0_finish()
        AK,AV,AQ=192,208,224
        WF=[32,24]
        k.waitvm(tw[0],k.lastlg()); e('s_barrier')
        self.stamp('kv0')
        e('v_lshrrev_b32 v46, 4, v%d',vL); e('v_and_b32 v47, 7, v%d',vL); e('v_xor_b32 v47, v47, v46'); e('v_lshrrev_b32 v46, 3, v%d',vL); e('v_lshlrev_b32 v46, 10, v46'); e('v_lshl_add_u32 v46, v47, 4, v46')
        e('v_xor_b32 v47, 64, v46')
        e('s_lshl_b32 s52, s%d, 7',sHG); e('s_add_u32 s52, s52, s54'); e('s_add_u32 s53, s52, 8192')
        pend=[(lambda:self.m0(sW11,L_XR),lambda:self.dma(46,SX,52)),(lambda:self.m0(sW11,L_XR+1024),lambda:setattr(self,'txr',self.dma(47,SX,53)))]
        def kreads(j):
            n=j>>1; c,s=n>>2,n&3; slot=(c%4)*16384; b=WF[n&1]+4*(j&1)
            if j&1==0:
                if s==0: e('v_add_u32 v23, s%d, v10',sXK+c)
                e('ds_read_b128 %s, v23 offset:%d',R(4*n,4,'a'),32*s)
            for t in range(2): last=e('ds_read_b64_tr_b16 %s, v18 offset:%d',R(b+2*t,2),slot+(j&1)*8192+s*2048+t*512)
            return last
        def kbar(j):
            if j%8==0 and j>0:
                c=j>>3
                k.waitvm(tw[c]); e('s_barrier')
                if c>=2: pend.extend(self.wdma(c+2))
        st={}
        def kmf(j):
            n=j>>1
            if j&1 and pend: st['p']=pend.pop(0); st['p'][0]()
            self.mfma(R(AV if j&1 else AK,16),R(4*n,4,'a'),R(WF[n&1]+4*(j&1)),'0' if n==0 else None)
            if st.get('p'): st.pop('p')[1]()
        def kfill(j):
            if j&1==0: return
            c,s=j>>3,(j>>1)&3
            if c==5 and s==0:
                e('s_lshl_b32 s52, s%d, 1',sHG); e('s_and_b32 s53, s%d, 1',sTB); e('s_add_u32 s52, s52, s53'); e('s_lshl_b32 s52, s52, 6'); e('s_add_u32 s60, s52, %d',WS_ZF)
                e('v_and_b32 v46, 3, v%d',vL); e('v_lshlrev_b32 v46, 3, v46')
                e('s_lshl_b32 s61, s%d, 9',sX); e('s_add_u32 s61, s61, %d',WS_XC); e('v_and_b32 v47, 0x1f0, v%d',vL16)
                self.wsld(R(60,2),46,60,w=2); self.tz=self.wsld(R(56),47,61)
            if c==6 and s==0:
                e('s_mul_i32 s52, s%d, 6144',sTT); e('s_mul_i32 s53, s%d, 3072',sHP); e('s_add_u32 s52, s52, s53'); e('s_add_u32 s52, s52, %d',L_P0)
                e('v_add_u32 v40, s52, v%d',vL16)
                e('v_bfe_u32 v41, v%d, 2, 1',vL); e('v_lshlrev_b32 v41, 5, v41'); e('v_and_b32 v42, 0x13, v%d',vL); e('v_add_u32 v41, v41, v42')
            if c==6 and s==1:
                e('v_bfe_u32 v42, v%d, 3, 1',vL); e('v_lshl_add_u32 v41, v42, 2, v41'); e('v_lshrrev_b32 v42, 5, v%d',vL); e('v_lshl_add_u32 v41, v42, 3, v41')
                e('v_lshlrev_b32 v41, 4, v41'); e('v_add_u32 v41, s52, v41')
                e('s_lshl_b32 s53, s%d, 1',sTB); e('s_add_u32 s53, s53, s%d',sTT); e('s_and_b32 s53, s53, 31'); e('s_add_u32 s53, s53, 32')
            if c==6 and s==2:
                e('v_cmp_eq_u32 s[62:63], s53, v%d',vL); e('v_cmp_gt_u32 s[64:65], 32, v%d',vL)
                e('s_mul_i32 s52, s%d, 1536',sW); e('s_add_u32 s53, s52, %d',L_P0); e('v_lshlrev_b32 v42, 2, v%d',vL); e('v_add_u32 v43, s53, v42')
                e('v_cndmask_b32 v45, 0, v45, s[62:63]')
            if c==6 and s==3:
                e('s_and_b32 s53, s%d, 1',sTB); e('s_mul_i32 s53, s53, %d',16*3072); e('s_mul_i32 s55, s%d, 6144',sHG); e('s_add_u32 s53, s53, s55'); e('s_add_u32 s53, s53, s52'); e('s_add_u32 s55, s53, %d',WS_KV)
            if c==7 and s==0:
                for i in range(4): e('v_mov_b32 v%d, v22',144+i)
                for g in range(3): e('v_mov_b32 v%d, 0.5',128+4*g+3)
                e('v_and_b32 v23, 16, v%d',vL) if False else None
        self.pipe(64,3,kreads,kmf,kbar,kfill)
        for a,b in pend: a(); e('s_nop 0'); b()
        self.stamp('kvdone')
        e('s_mov_b32 vcc_lo, 0xffff0000'); e('s_mov_b32 vcc_hi, 0xffff0000')
        PK,PV,TM=48,32,160
        for j in range(8): e('v_cvt_pk_bf16_f32 v%d, v%d, v%d',PV+j,AV+2*j,AV+2*j+1)
        self.phi(AK,16,PK,TM)
        KVA,ZA=160,176
        self.mfma(R(KVA,16),R(PK),R(PV),'0'); self.mfma(R(ZA,16),R(144),R(PK),'0')
        self.mfma(R(KVA,16),R(PK+4),R(PV+4)); self.mfma(R(ZA,16),R(144),R(PK+4))
        Lp=k.newlabel('zp'); Lo=k.newlabel('zo')
        k.waitvm(self.tz)
        e('s_mov_b32 s%d, 0',sSPIN)
        k.label(Lp)
        e('v_cmp_ne_u64 s[52:53], v[60:61], %s',R(vN,2)); e('v_cmp_ne_u64 s[62:63], v[56:57], %s',R(vN,2)); e('s_or_b64 s[52:53], s[52:53], s[62:63]')
        e('s_cbranch_scc0 %s',Lo)
        e('s_add_u32 s%d, s%d, 1',sSPIN,sSPIN); e('s_cmp_gt_u32 s%d, %d',sSPIN,SPIN); e('s_cbranch_scc1 L_end')
        sv=(list(k.vm),k.vmdone,dict(k.pend))
        self.wsld(R(60,2),46,60,w=2); self.wsld(R(56),47,61); e('s_waitcnt vmcnt(0)'); e('s_branch %s',Lp)
        k.vm,k.vmdone,k.pend=sv
        k.label(Lo)
        e('v_cmp_ne_u32 s[52:53], s%d, v58',sLOC); e('s_cmp_eq_u64 s[52:53], 0'); e('s_cselect_b32 s%d, 1, 0',sLOC)
        e('s_cselect_b32 s52, 0, 0x%x',OOB); e('s_cselect_b32 s53, 0x%x, 0',OOB)
        e('v_mov_b32 v%d, 0x%x',vFP,OOB); e('v_mov_b32 v%d, 0x%x',vFG,OOB); e('v_writelane_b32 v%d, s52, 0',vFP); e('v_writelane_b32 v%d, s53, 0',vFG)
        S=128
        for j in range(8): e('v_cndmask_b32 v%d, v%d, v%d, vcc',S+4*(j//3)+j%3,KVA+j,KVA+8+j)
        e('v_cndmask_b32 v45, v45, v%d, s[64:65]',ZA)
        for g in range(3): e('ds_write_b128 v40, %s offset:%d',R(S+4*g),1024*g)
        e('ds_write_b32 v41, v45 offset:%d',2048+8)
        k.waitvm(self.txr,k.lastlg()); e('s_barrier')
        for i in range(6): last=e('ds_read2st64_b32 %s, v43 offset0:%d offset1:%d',R(S+2*i,2),i,i+24)
        for a,b in self.wdma(10)+self.wdma(11): a(); e('s_nop 0'); b()
        k.waitvm(self.tp0st,last)
        for i in range(6): e('v_add_f32 v%d, v%d, v%d',S+2*i,S+2*i,S+2*i+1)
        for i in range(6): e('buffer_atomic_add_f32 v%d, v42, s[%d:%d], s55 offen offset:%d',S+2*i,SWS,SWS+3,256*i)
        self.stamp('atom')
        XR=240
        for q in range(4):
            if q: e('v_xor_b32 v23, %d, v19',16*q)
            e('ds_read_b64 %s, v%d',R(XR+2*q,2),23 if q else 19)
        e('ds_read_b32 v248, v44')
        QB=[32,36,24,28]
        def qreads(j):
            c,s=8+(j>>3),j&7; slot=(c%4)*16384
            for t in range(2): last=e('ds_read_b64_tr_b16 %s, v18 offset:%d',R(QB[j&3]+2*t,2),slot+(s>>2)*8192+(s&3)*2048+t*512)
            return last
        def qbar(j):
            if j==0: k.waitvm(tw[9]); e('s_barrier')
            if j==16: k.waitvm(tw[11]); e('s_barrier')
        def qfill(n):
            if n==2:
                e('s_lshl_b32 s52, s%d, 1',sHG); e('s_add_u32 s52, s52, s%d',sHP); e('s_mul_i32 s52, s52, 3072'); e('s_add_u32 s52, s52, %d',WS_KV); e('s_add_u32 s53, s52, %d',16*3072)
            if n==4:
                e('s_lshl_b32 s60, s%d, 1',sTB); e('s_add_u32 s60, s60, s%d',sTT); e('s_mul_i32 s60, s60, %d',33*1024); e('s_add_u32 s60, s60, %d',WS_O)
            if n==6:
                e('s_lshl_b32 s61, s%d, 1',sHG); e('s_add_u32 s61, s61, s%d',sHP); e('s_lshl_b32 s62, s61, 11'); e('s_add_u32 s62, s62, s60')
            if n==8:
                e('s_lshl_b32 s63, s61, 6'); e('v_lshlrev_b32 v47, 1, v%d',vL)
            if n==10:
                e('s_add_u32 s63, s63, s60'); e('s_add_u32 s63, s63, 32768')
                e('s_lshl_b32 s64, s%d, 3',sTB); e('s_add_u32 s64, s64, s%d',sHG); e('s_lshl_b32 s64, s64, 3'); e('s_add_u32 s64, s64, %d',WS_F1)
            if n==12:
                e('s_lshl_b32 s56, s%d, 17',sW); e('s_lshl_b32 s57, s%d, 7',sHG); e('s_add_u32 s56, s56, s57'); e('v_add_u32 v11, s56, v11'); e('s_lshl_b32 s57, s%d, 14',sW)
            if n==14:
                e('s_lshl_b32 s58, s%d, 2',sQ)
        self.pipe(32,3,qreads,lambda j:self.mfma(R(AQ,16),R(QB[j&3]),R(4*j,4,'a'),'0' if j==0 else None),qbar,qfill)
        self.stamp('qdone')
        PQ=48
        self.phi(AQ,16,PQ,160)
        KL=128
        e('s_mov_b32 s%d, 0',sSPIN); e('v_mov_b32 v28, 0x%x',f2u(16.0))
        Lp=k.newlabel('kvp'); k.label(Lp)
        for r in range(2):
            for g in range(3): self.wsld(R(KL+12*r+4*g),vL16,52+r,off=1024*g)
        e('s_add_u32 s%d, s%d, 1',sSPIN,sSPIN); e('s_cmp_gt_u32 s%d, %d',sSPIN,SPIN); e('s_cbranch_scc1 L_end')
        e('s_waitcnt vmcnt(0)')
        for i in range(0,6,2): e('v_min_f32 v%d, v%d, v%d',KL+4*i+3,KL+4*i+3,KL+4*i+7)
        e('v_min3_f32 v%d, v%d, v%d, v%d',KL+3,KL+3,KL+11,KL+19)
        e('v_cmp_neq_f32 vcc, v%d, v28',KL+3)
        e('s_cbranch_vccnz %s',Lp)
        self.stamp('kvok')
        def wo(i):
            e('s_add_u32 s59, s58, %d',i); e('s_and_b32 s59, s59, 15'); e('s_lshl_b32 s65, s59, 10'); e('s_add_u32 m0, s65, s57'); e('s_lshl_b32 s59, s59, 13')
            self.two=self.dma(11,SWO,59)
        self.wo=wo
        for g in range(3):
            e('v_pk_add_f32 %s, %s, %s',R(KL+4*g,2),R(KL+4*g,2),R(KL+12+4*g,2)); e('v_add_f32 v%d, v%d, v%d',KL+4*g+2,KL+4*g+2,KL+12+4*g+2)
        ZB=160
        sel=[KL+4*(j//3)+j%3 for j in range(8)]
        AA,AB,WB=56,60,36
        for j in range(4): e('v_cvt_pk_bf16_f32 v%d, v%d, v%d',AA+j,sel[2*j],sel[2*j+1])
        for j in range(8): e('v_mov_b32_dpp v%d, v%d row_newbcast:%d row_mask:0xf bank_mask:0xf',ZB+j,KL+10,j)
        for j in range(4): e('v_cvt_pk_bf16_f32 v%d, v%d, v%d',AB+j,ZB+2*j,ZB+2*j+1)
        e('s_nop 0')
        for j in range(4): e('v_permlane16_swap_b32 v%d, v%d',AA+j,AB+j)
        e('s_nop 0')
        self.mfma(R(AK,16),R(AA),R(PQ),'0'); self.mfma(R(AV,16),R(AB),R(PQ+4),'0')
        for j in range(8): e('v_mov_b32_dpp v%d, v%d row_newbcast:%d row_mask:0xf bank_mask:0xf',ZB+j,KL+10,8+j)
        for j in range(4): e('v_cvt_pk_bf16_f32 v%d, v%d, v%d',WB+j,ZB+2*j,ZB+2*j+1)
        e('v_add_f32 v28, 0x%x, v%d',f2u(1e-6),AK+8); e('v_add_f32 v30, 0x%x, v%d',f2u(1e-6),AV+8); e('v_rcp_f32 v28, v28'); e('v_rcp_f32 v30, v30')
        for h,A in enumerate((AK,AV)):
            for j in range(0,8,2): e('v_pk_mul_f32 %s, %s, %s op_sel_hi:[1,0]',R(A+j,2),R(A+j,2),R(28+2*h,2))
            for j in range(4): e('v_cvt_pk_bf16_f32 v%d, v%d, v%d',PQ+4*h+j,A+2*j,A+2*j+1)
            self.wsst(R(PQ+4*h),vL16,62,off=1024*h)
            self.mfma(R(160+16*h,16),R(WB),R(PQ+4*h),'0')
        self.stamp('ost')
        wo(0); wo(1)
        e('v_add_f32 v28, v160, v184'); e('v_cvt_pk_bf16_f32 v28, v28, v28')
        e('s_mov_b64 exec, 0xffffffff'); tst=self.wsst('v28',47,63,w=0); e('s_mov_b64 exec, -1')
        for i in range(2,self.opt.get('nwo',6)): wo(i)
        self.stamp('woiss')
        k.waitvm(tst); self.stamp('oack'); e('s_barrier')
        e('s_cmp_eq_u32 s%d, 0',sW); e('s_cselect_b32 s64, s64, 0x%x',OOB)
        self.flag2(64)
        self.stamp('oflag')
    def poll_o(self):
        k=self.k; e=k.e
        e('v_and_b32 v17, 7, v%d',vL); e('v_lshlrev_b32 v17, 3, v17'); e('s_lshl_b32 s52, s%d, 6',sTB); e('s_add_u32 s52, s52, %d',WS_F1)
        self.poll(17,52,14)
    def epoch(self):
        k=self.k; e=k.e
        e('s_cmp_eq_u32 s2, 0'); e('s_cselect_b32 s52, %d, 0x%x',WS_EPOCH,OOB)
        e('s_mov_b64 exec, 1'); self.wsst(R(vN,2),vZ,52,w=2,flags=''); e('s_mov_b64 exec, -1')
    def wgu(self,i,half):
        k=self.k; e=k.e; slot=[131072,0,32768,65536,98304,131072][i]
        def f0():
            e('s_add_u32 s66, s%d, %d',self.sWG,i*32768+half*4096); self.m0(self.sW13,slot+half*4096)
        out=[]
        for q in range(4):
            def f(q=q):
                if q==0: f0(); e('s_nop 0') if False else None
                self.tg[i]=self.dma(vL16,SWS,66,'sc1',off=1024*q)
            out.append(f)
        return out
    def p2(self):
        k=self.k; e=k.e; o=self.opt
        for i in range(o.get('nwo',6),16): self.wo(i)
        self.sWG,self.sW13,sO,sT=84,85,86,87
        e('s_lshl_b32 s66, s%d, 1',sHG); e('s_and_b32 s67, s%d, 1',sQ); e('s_add_u32 s88, s66, s67')
        e('s_mul_i32 s84, s88, %d',6*32768); e('s_lshl_b32 s85, s%d, 13',sW); e('s_add_u32 s84, s84, s85'); e('s_add_u32 s84, s84, %d',WS_WGU)
        e('s_lshl_b32 s86, s%d, 1',sTB); e('s_add_u32 s87, s86, s%d',sTT)
        e('s_mul_i32 s86, s87, %d',33*1024); e('s_lshl_b32 s66, s%d, 12',sHP); e('s_add_u32 s86, s86, s66'); e('s_add_u32 s86, s86, %d',WS_O)
        e('s_lshl_b32 s89, s%d, 15',sTT); e('s_add_u32 s90, s89, s66')
        e('s_add_u32 s89, s89, %d',L_O); e('v_add_u32 v10, s89, v%d',vL16)
        e('v_bfe_u32 v14, v%d, 2, 2',vL); e('v_lshlrev_b32 v14, 6, v14'); e('v_and_b32 v15, 3, v%d',vL); e('v_lshl_add_u32 v14, v15, 3, v14')
        e('v_bfe_u32 v15, v%d, 4, 1',vL); e('v_lshl_add_u32 v14, v15, 5, v14'); e('v_lshrrev_b32 v15, 5, v%d',vL); e('v_lshl_add_u32 v14, v15, 9, v14'); e('v_add_u32 v12, s89, v14')
        self.tg={}
        self.poll_o()
        self.stamp('o_ok')
        to={}
        for c in range(4):
            e('s_add_u32 s52, s86, %d',c*8192); self.m0(90,L_O+c*8192)
            if c==0: e('s_nop 0')
            for q in range(4): to[c]=self.dma(vL16,SWS,52,'sc1',off=1024*q)
        self.epoch()
        pend=self.wgu(0,0)+self.wgu(0,1)
        ACC=192; PB=[24,32,128,136]
        def reads(j):
            b=PB[j&3]
            e('ds_read_b128 %s, v10 offset:%d',R(b+4),j*1024)
            for t in range(2): last=e('ds_read_b64_tr_b16 %s, v13 offset:%d',R(b+2*t,2),L_WO+j*2048+t*1024)
            return last
        st={}
        def bar(j):
            if j%8==0:
                k.waitvm(to[j>>3]); e('s_barrier')
                if j==0: self.stamp('o0')
                if j==16:
                    e('s_lshl_b32 s66, s%d, 12',sHP); e('s_sub_u32 s52, s86, s66'); e('s_add_u32 s52, s52, 32768'); e('s_mov_b32 m0, s89'); e('s_nop 0')
                    st['ext']=self.dma(vL16,SWS,52,'sc1')
        def fill(j):
            if pend and j>=14 and j%2==0: pend.pop(0)()
            if j==1:
                for i in range(4): e('v_mov_b32 v%d, v22',144+i)
            if j==3: e('s_lshl_b32 s60, s87, 5'); e('s_lshl_b32 s61, s%d, 1',sHG); e('s_add_u32 s61, s61, s%d',sHP)
            if j==5: e('s_lshl_b32 s62, s61, 1'); e('s_add_u32 s60, s60, s62'); e('s_lshl_b32 s60, s60, 10'); e('s_add_u32 s60, s60, %d',WS_H)
            if j==7: e('s_lshl_b32 s62, s87, 4'); e('s_add_u32 s62, s62, s61'); e('s_lshl_b32 s63, s62, 7'); e('s_add_u32 s63, s63, %d',WS_STAT)
            if j==9: e('s_lshl_b32 s62, s62, 3'); e('s_add_u32 s62, s62, %d',WS_F2); e('v_lshlrev_b32 v47, 2, v%d',vL)
            if 11<=j<27:
                r=j-11; x=240+r//2
                if r&1: e('v_and_b32 v%d, s%d, v%d',160+r,sMASK,x)
                else: e('v_lshlrev_b32 v%d, 16, v%d',160+r,x)
        self.pipe(32,3,reads,lambda j:self.mfma(R(ACC,16),R(PB[j&3]),R(PB[j&3]+4),'0' if j==0 else None),bar,fill)
        self.stamp('p2mm')
        k.waitvm(st['ext']); e('s_barrier')
        e('ds_read_b64_tr_b16 v[24:25], v12'); t=e('ds_read_b64_tr_b16 v[26:27], v12 offset:256')
        for f in self.wgu(1,0): f()
        k.waitlg(t)
        self.mfma(R(208,16),R(144),R(24),'0')
        for j in range(0,16,2): e('v_pk_add_f32 %s, %s, %s',R(ACC+j,2),R(ACC+j,2),R(160+j,2))
        for j in range(8): e('v_cvt_pk_bf16_f32 v%d, v%d, v%d',240+j,ACC+2*j,ACC+2*j+1)
        e('v_add_f32 v28, v248, v208')
        for j in range(0,16,2): e('v_pk_add_f32 %s, %s, v[28:29] op_sel_hi:[1,0] neg_lo:[0,1] neg_hi:[0,1]',R(ACC+j,2),R(ACC+j,2))
        for j in range(8): e('v_cvt_pk_bf16_f32 v%d, v%d, v%d',128+j,ACC+2*j,ACC+2*j+1)
        self.wsst(R(128),vL16,60); self.wsst(R(132),vL16,60,off=1024)
        for j in range(8):
            d=24+(j&1)
            e('v_dot2_f32_bf16 v%d, v%d, v%d, %s',d,128+j,128+j,'0' if j<2 else 'v%d'%d)
        e('v_add_f32 v24, v24, v25'); e('v_mov_b32 v25, v24'); e('v_permlane32_swap_b32 v24, v25'); e('v_add_f32 v24, v24, v25')
        e('s_mov_b64 exec, 0xffffffff'); tst=self.wsst('v24',47,63,w=1); e('s_mov_b64 exec, -1')
        self.stamp('hst')
        for f in self.wgu(1,1)+(self.wgu(2,0) if o.get('g2',1) else []): f()
        k.waitvm(tst)
        self.flag2(62)
        self.stamp('hflag')
    def p4_consts(self):
        k=self.k; e=k.e
        e('s_mul_i32 s92, s%d, 6',sW)
        e('s_lshl_b32 s93, s%d, 2',sW); e('s_cmp_eq_u32 s%d, 3',sW); e('s_cselect_b32 s66, 1, 0'); e('s_sub_u32 s93, s93, s66'); e('s_add_u32 s93, s93, 72')
        e('s_cmp_ge_u32 s%d, 2',sW); e('s_cselect_b32 s94, 2, 3'); e('s_add_u32 s94, s94, s93')
        e('s_mul_i32 s95, s%d, %d',sHG,172*1024); e('s_add_u32 s95, s95, %d',WS_WD)
        e('s_mul_i32 s96, s%d, %d',sTB,172*1024); e('s_add_u32 s96, s96, %d',WS_A)
        for r in (92,93,94): e('s_lshl_b32 s%d, s%d, 10',r,r)
    def fragloads(self,base,regs):
        k=self.k; e=k.e; out=[]; tok={}
        for j0,n,sr,add in [(0,4,92,0),(4,2,92,4),(6,4,92,24),(10,2,92,28),(12,4,92,48),(16,2,92,52),(18,3,93,0),(21,1,94,0)]:
            for c in range(2):
                for q in range(n):
                    def f(j=j0+q,q=q,c=c,sr=sr,add=add):
                        if q==0:
                            e('s_add_u32 s67, s%d, s%d',base,sr)
                            if add or c: e('s_add_u32 s67, s67, %d',(add+86*c)*1024)
                        tok[(j,c)]=self.wsld(regs(j,c),vL16,67,off=1024*q)
                    out.append(f)
        return out,tok
    @staticmethod
    def wreg(j,c):
        n=2*j+c; return R(128+4*n,4,'a') if n<32 else R(128+4*(n-32))
    @staticmethod
    def areg(j,c):
        n=2*j+c; return R(4*n,4,'a') if n<32 else R(64+4*(n-32))
    def gelu(self,A,dst):
        e=self.k.e; out=[]; T=32
        C1,C3,IR=20,21,19
        def op(fmt,*a): out.append(lambda:e(fmt,*a))
        for h in range(2):
            js=range(4*h,4*h+4)
            for j in js: op('v_mul_f32 v%d, v%d, v%d',T+j,A+j,A+j)
            for j in js: op('v_fma_f32 v%d, v%d, v%d, v%d',T+j,T+j,C3,C1)
            for j in js: op('v_mul_f32 v%d, v%d, v%d',T+j,T+j,A+j)
            for j in js: op('v_exp_f32 v%d, v%d',T+j,T+j); op('v_mul_f32 v%d, v%d, v%d',A+j,A+j,A+8+j)
            for j in js: op('v_fma_f32 v%d, v%d, v%d, v%d',T+j,T+j,IR,IR)
            for j in js: op('v_rcp_f32 v%d, v%d',T+j,T+j)
            for j in js: op('v_mul_f32 v%d, v%d, v%d',A+j,A+j,T+j)
            for j in (4*h,4*h+2): op('v_cvt_pk_bf16_f32 v%d, v%d, v%d',dst+j//2,A+j,A+j+1)
        return out
    def p3(self):
        k=self.k; e=k.e; o=self.opt
        self.p4_consts()
        e('s_lshr_b32 s66, s%d, 1',sQ); e('s_lshl_b32 s66, s66, 2'); e('s_lshl_b32 s67, s%d, 3',sX); e('s_add_u32 s66, s66, s67'); e('s_add_u32 s87, s66, s%d',sW)
        e('s_lshl_b32 s60, s87, 15'); e('s_add_u32 s60, s60, %d',WS_H)
        e('s_lshl_b32 s61, s87, 11'); e('s_add_u32 s61, s61, %d',WS_STAT)
        e('s_lshl_b32 s62, s87, 7'); e('s_add_u32 s62, s62, %d',WS_F2)
        e('s_mul_i32 s66, s88, 6'); e('s_mul_i32 s63, s87, 86'); e('s_add_u32 s63, s63, s66'); e('s_lshl_b32 s63, s63, 10'); e('s_add_u32 s63, s63, %d',WS_A); e('s_add_u32 s65, s63, 4096')
        e('s_mul_i32 s64, s87, 96'); e('s_add_u32 s64, s64, s66'); e('s_lshl_b32 s64, s64, 3'); e('s_add_u32 s64, s64, %d',WS_F3)
        e('v_and_b32 v17, 15, v%d',vL); e('v_lshlrev_b32 v17, 3, v17'); e('v_lshlrev_b32 v16, 2, v%d',vL)
        e('v_add_u32 v10, 65536, v%d',vL16); e('v_add_u32 v11, 131072, v%d',vL16)
        wl,self.twd=self.fragloads(95,self.wreg)
        Lskip=k.newlabel('p3skip'); Lshort=k.newlabel('p3short'); Ldone=k.newlabel('p3done')
        e('s_cmp_ge_u32 s88, 15'); e('s_cbranch_scc1 %s',Lskip)
        pend=[]
        if not o.get('g2',1): pend+=self.wgu(2,0)
        for f in self.wgu(2,1): f()
        tF01=self.tg[1]
        self.poll(17,62,14)
        self.stamp('h_ok')
        th={}
        hl=[]
        for s in range(32):
            def f(s=s):
                if s%4==0: e('s_add_u32 s52, s60, %d',s*1024)
                th[s]=self.wsld(R(4*s,4,'a'),vL16,52,off=1024*(s%4))
            hl.append(f)
        sl=[(lambda m=m: th.__setitem__(('s',m),self.wsld('v%d'%(40+m),16,61,off=256*m,w=1))) for m in range(8)]
        NH=o.get('nh0',10)
        for f in hl[:NH]: f()
        pend=hl[NH:]+sl+pend+self.wgu(3,0)+self.wgu(3,1)+self.wgu(4,0)+self.wgu(4,1)
        e('s_barrier')
        ACC=[192,208,224]; WB=[24,28,48,52]
        seq=[(f,s) for s in range(32) for f in range(2)]+[(f,s) for f in range(2,6) for s in range(32)]
        slotoff=[131072,0,32768,65536,98304,131072]
        def reads(j):
            f,s=seq[j]; off=slotoff[f]+s*1024
            v,off=(vL16,off) if off<65536 else ((10,off-65536) if off<131072 else (11,off-131072))
            return e('ds_read_b128 %s, v%d offset:%d',R(WB[j&3]),v,off)
        epi=[]; st={}; tst={}
        def stats():
            out=[]
            def op(fmt,*a): out.append(lambda:e(fmt,*a))
            out.append(lambda:k.waitvm(th[('s',7)]))
            for a,b in ((40,41),(42,43),(44,45),(46,47)): pass
            op('v_add_f32 v40, v40, v41'); op('v_add_f32 v42, v42, v43'); op('v_add_f32 v44, v44, v45'); op('v_add_f32 v46, v46, v47')
            op('v_add_f32 v40, v40, v42'); op('v_add_f32 v44, v44, v46'); op('v_add_f32 v40, v40, v44'); op('v_mov_b32 v41, v40')
            op('s_nop 0'); op('v_permlane32_swap_b32 v40, v41'); op('v_add_f32 v40, v40, v41'); op('v_mul_f32 v40, 0x%x, v40',f2u(1/512.))
            op('v_cvt_pk_bf16_f32 v41, v40, v40'); op('v_lshlrev_b32 v40, 16, v41'); op('v_add_f32 v40, 0x%x, v40',f2u(1e-5))
            op('v_cvt_pk_bf16_f32 v41, v40, v40'); op('v_lshlrev_b32 v40, 16, v41'); op('v_sqrt_f32 v40, v40'); op('s_nop 0')
            op('v_cvt_pk_bf16_f32 v41, v40, v40'); op('v_lshlrev_b32 v40, 16, v41'); op('v_rcp_f32 v41, v40'); op('v_mul_f32 v19, v40, v40')
            K0=-2*0.7978845608028654*1.4426950408889634
            op('v_mul_f32 v20, 0x%x, v41',f2u(K0)); op('v_mul_f32 v41, v41, v41'); op('v_mul_f32 v41, 0x%x, v41',f2u(0.044715)); op('v_mul_f32 v21, v20, v41')
            return out
        def unit_epi(u):
            D=56+4*(u&1)
            def store(): tst[u]=self.wsst(R(D),vL16,63 if u<4 else 65,off=1024*(u&3))
            return self.gelu(ACC[u%3],D)+[store]
        def flag(u):
            def f():
                k.waitvm(tst[u]); self.flag2(64,off=8*u)
            return f
        def bar(j):
            f,s=seq[j]
            if f>=2 and s==0:
                if f==2:
                    pass
                k.waitvm(self.tg[f]); e('s_barrier')
                if f==3: pend[0:0]=self.wgu(5,0)+self.wgu(5,1)
        def mf(j):
            f,s=seq[j]
            if f<2 and j%2==0: k.waitvm(th[s])
            self.mfma(R(ACC[f%3],16),R(WB[j&3]),R(4*s,4,'a'),'0' if s==0 else None)
        sst=stats()
        def fill(j):
            if j<64:
                if pend: pend.pop(0)()
                if j>=44:
                    for _ in range(2):
                        if sst: sst.pop(0)()
            else:
                jj=j-64
                if jj==0:
                    assert not sst
                    pend.extend(wl)
                    epi.extend(unit_epi(0)+unit_epi(1)+[flag(0)])
                if jj==33: epi.extend(unit_epi(2)+[flag(1)])
                if jj==65: epi.extend(unit_epi(3)+[flag(2)])
                if jj==97: epi.extend(unit_epi(4)+[flag(3)])
                if jj%2==1 and pend: pend.pop(0)()
                n=3 if (jj<96) else 3
                if jj in (0,32,64,96): n=0
                for _ in range(n):
                    if epi: epi.pop(0)()
        tok={}
        L=3; n=len(seq)
        for j in range(L): tok[j]=reads(j)
        for j in range(n):
            k.waitlg(tok[j]); mf(j)
            if j==63-L+1-1+0 and False: pass
            if j+L<n:
                if j+L==64:
                    e('s_cmp_eq_u32 s88, 14'); e('s_cbranch_scc1 %s',Lshort)
                    snap=(list(k.vm),k.vmdone,list(k.lg),k.lgdone,dict(k.pend),list(k.hist),list(pend),list(sst),dict(tok))
                bar(j+L); tok[j+L]=reads(j+L)
            fill(j)
            if j==63: self.stamp('pair')
        self.stamp('p3mm')
        while pend: pend.pop(0)()
        while epi: epi.pop(0)()
        for f in unit_epi(5): f()
        flag(4)(); self.stamp('a5st'); flag(5)()
        self.stamp('aflag')
        e('s_branch %s',Ldone)
        main=(list(k.vm),k.vmdone,list(k.lg),k.lgdone,dict(k.pend))
        k.label(Lshort)
        k.vm,k.vmdone,k.lg,k.lgdone,k.pend,k.hist,_,sst2,tok=snap
        for f in sst2: pass
        for j in range(64-L,64):
            if j>64-L: k.waitlg(tok[j]); mf(j)
        for f in sst2: f()
        for u in range(2):
            for f in unit_epi(u): f()
        e('s_waitcnt vmcnt(0)'); self.flag2(64,off=0); self.flag2(64,off=8)
        k.label(Lskip)
        wl2,_=self.fragloads(95,self.wreg)
        k.check=False
        for f in wl2: f()
        e('s_waitcnt vmcnt(0) lgkmcnt(0)')
        k.check=True
        k.label(Ldone)
        k.vm,k.vmdone,k.lg,k.lgdone,k.pend=main
    def p4(self):
        k=self.k; e=k.e; o=self.opt
        e('v_min_u32 v14, 43, v%d',vL); e('v_cmp_le_u32 vcc, 22, v14'); e('v_subrev_u32 v15, 22, v14'); e('v_cndmask_b32 v14, v14, v15, vcc')
        e('v_cndmask_b32 v16, 0, 1, vcc')
        e('v_mul_u32_u24 v15, 43, v14'); e('v_lshrrev_b32 v15, 8, v15')
        e('v_mul_u32_u24 v17, 18, v15'); e('v_add_u32 v17, v17, v14'); e('s_lshr_b32 s52, s92, 10'); e('v_add_u32 v17, s52, v17')
        e('s_lshr_b32 s52, s93, 10'); e('s_lshr_b32 s53, s94, 10'); e('v_subrev_u32 v15, 18, v14'); e('v_add_u32 v15, s52, v15'); e('v_min_u32 v15, s53, v15')
        e('v_cmp_le_u32 vcc, 18, v14'); e('v_cndmask_b32 v17, v17, v15, vcc')
        e('v_mul_u32_u24 v16, 96, v16'); e('v_add_u32 v17, v17, v16'); e('v_lshlrev_b32 v17, 3, v17')
        e('s_mul_i32 s52, s%d, %d',sTB,2*96*8); e('s_add_u32 s52, s52, %d',WS_F3)
        ACC=[192,208,224,176]
        for r in range(16):
            x=240+r//2
            if r&1: e('v_and_b32 v%d, s%d, v%d',24+r,sMASK,x)
            else: e('v_lshlrev_b32 v%d, 16, v%d',24+r,x)
        for t in range(4):
            e('s_cmp_eq_u32 s%d, %d',sW,t); e('s_cselect_b32 s53, -1, 0')
            for r in range(16): e('v_and_b32 v%d, s53, v%d',ACC[t]+r,24+r)
        e('v_and_b32 v14, 31, v%d',vL); e('v_mul_u32_u24 v14, 272, v14'); e('v_lshrrev_b32 v15, 5, v%d',vL); e('v_lshl_add_u32 v18, v15, 4, v14'); e('s_mul_i32 s53, s%d, 17408',sW); e('v_add_u32 v18, s53, v18')
        e('v_lshrrev_b32 v14, 3, v%d',vL); e('v_and_b32 v15, 7, v%d',vL); e('v_mul_u32_u24 v19, 272, v14'); e('v_lshl_add_u32 v19, v15, 5, v19'); e('s_mul_i32 s53, s%d, %d',sW,16*272); e('v_add_u32 v19, s53, v19')
        e('v_lshlrev_b32 v20, 10, v14'); e('v_lshl_add_u32 v20, v15, 4, v20')
        e('s_lshl_b32 s60, s%d, 2',sTB); e('s_add_u32 s60, s60, s%d',sW); e('s_lshl_b32 s60, s60, 14'); e('s_lshl_b32 s53, s%d, 7',sHG); e('s_add_u32 s60, s60, s53'); e('s_add_u32 s61, s60, 8192')
        self.poll(17,52,14)
        self.stamp('a_ok')
        al,ta=self.fragloads(96,self.areg)
        NA=o.get('na0',10)
        for f in al[:NA]: f()
        pend=al[NA:]
        Ls=k.newlabel('p4s')
        for j in range(22):
            if j==21:
                while pend: pend.pop(0)()
                e('s_cmp_ge_u32 s%d, 2',sW); e('s_cbranch_scc1 %s',Ls)
            for tt in range(2):
                while (j,tt) not in ta: pend.pop(0)()
                k.waitvm(ta[(j,tt)])
                for ct in range(2):
                    self.mfma(R(ACC[tt+2*ct],16),self.wreg(j,ct),self.areg(j,tt))
                    if pend and ct==0: pend.pop(0)()
        k.label(Ls)
        self.stamp('p4mm')
        for tt in range(2):
            for ct in range(2):
                for q in range(4): last=e('ds_write_b128 v18, %s offset:%d',R(ACC[tt+2*ct]+4*q),tt*32*272+ct*128+q*32)
        k.waitlg(last); e('s_barrier')
        for r in range(2):
            for p in range(4):
                for h in range(2): last=e('ds_read_b128 %s, v19 offset:%d',R(64+32*r+8*p+4*h),p*17408+r*8*272+h*16)
            self.tl=getattr(self,'tl',{}); self.tl[r]=last
        for r in range(2):
            k.waitlg(self.tl[r]); B=64+32*r
            for j in range(0,8,2):
                e('v_pk_add_f32 %s, %s, %s',R(B+j,2),R(B+j,2),R(B+8+j,2)); e('v_pk_add_f32 %s, %s, %s',R(B+16+j,2),R(B+16+j,2),R(B+24+j,2))
            for j in range(0,8,2): e('v_pk_add_f32 %s, %s, %s',R(B+j,2),R(B+j,2),R(B+16+j,2))
            for j in range(4): e('v_cvt_pk_bf16_f32 v%d, v%d, v%d',B+8+j,B+2*j,B+2*j+1)
            e('buffer_store_dwordx4 %s, v20, s[%d:%d], s%d offen',R(B+8),SO,SO+3,60+r)
def report(g,s):
    print('nops',g.k.nops,'lines',len(s.split('\n')))
    import collections
    c=collections.Counter()
    for n,p,t in g.k.noplog: c[(p.split()[0],t.split()[0])]+=n
    print(c.most_common(20))
if __name__=='__main__':
    stop=sys.argv[1] if len(sys.argv)>1 else None
    if stop=='all': stop=None
    g=G(stamps=True,stop=stop); s=g.build(); open('k_t.s','w').write(s); report(g,s)
    import harness, cdna_launch as CL
    harness.build('k_t.s'); print(CL.address_register_problem('k_t.co', KN))
```

```python
import re
REG=re.compile(r'^(v|a|s)(\d+)$|^(v|a|s)\[(\d+):(\d+)\]$')
def regs(op):
    op=op.strip()
    neg=op.lstrip('-')
    if neg.startswith('abs(') and neg.endswith(')'): neg=neg[4:-1]
    if neg.startswith('|') and neg.endswith('|'): neg=neg[1:-1]
    if neg=='vcc': return {('s','vcc')}
    if neg in('vcc_lo','vcc_hi'): return {('s','vcc')}
    if neg=='exec': return {('s','exec')}
    if neg=='m0': return {('s','m0')}
    m=REG.match(neg)
    if not m: return set()
    if m.group(1): return {(m.group(1),int(m.group(2)))}
    return {(m.group(3),i) for i in range(int(m.group(4)),int(m.group(5))+1)}
TRANS=('v_exp_f32','v_log_f32','v_rcp_f32','v_rsq_f32','v_sqrt_f32','v_sin_f32','v_cos_f32','v_rcp_iflag_f32')
def split_ops(s):
    parts=[p.strip() for p in s.split(',')]
    ops=[];mods=[]
    j=', '.join(parts)
    j2=re.sub(r'(\w+):\[([^\]]*)\]', lambda m: m.group(1)+':{'+m.group(2).replace(',',';').replace(' ','')+'}', j)
    parts=[p.strip() for p in j2.split(',')]
    for i,p in enumerate(parts):
        toks=p.split()
        if not toks: continue
        ops.append(toks[0]); mods+=toks[1:]
    return ops,mods
class Ins:
    __slots__=('text','mn','w','r','kind','passes','srcC','mods','dpp','states','storedata')
def parse(text):
    t=text.split(';')[0].strip()
    mn,_,rest=t.partition(' ')
    ops,mods=split_ops(rest) if rest.strip() else ([],[])
    I=Ins(); I.text=text; I.mn=mn; I.mods=mods; I.w=set(); I.r=set(); I.kind='other'; I.passes=0; I.srcC=set(); I.dpp=False; I.states=1; I.storedata=set()
    base=re.sub(r'_(e32|e64|dpp|sdwa)$','',mn)
    R=[regs(o) for o in ops]
    if mn=='s_nop': I.states=int(ops[0],0)+1; I.kind='nop'
    elif mn.startswith('v_mfma'):
        I.kind='mfma'; I.w=R[0]; I.r=R[1]|R[2]|R[3]; I.srcC=R[3]
        I.passes={'32x32x16':8,'16x16x32':4,'4x4x4':2}[re.search(r'(\d+x\d+x\d+)',mn).group(1)]
    elif mn.startswith('v_'):
        I.kind='valu'
        I.dpp = mn.endswith('_dpp') or any(m.startswith(('row_','quad_perm','wave_')) for m in mods)
        if base in TRANS: I.kind='trans'
        if base.startswith('v_cmpx'):
            I.w=R[0]|{('s','exec')}; I.r=set().union(*R[1:])
        elif base.startswith('v_cmp'):
            I.w=R[0]; I.r=set().union(*R[1:])
        elif base in('v_permlane32_swap_b32','v_permlane16_swap_b32'):
            I.kind='permlane'; I.w=R[0]|R[1]; I.r=R[0]|R[1]
        elif base in('v_readfirstlane_b32','v_readlane_b32'):
            I.kind='readlane'; I.w=R[0]; I.r=set().union(*R[1:])
        elif base in('v_add_co_u32','v_sub_co_u32','v_addc_co_u32','v_mad_u64_u32'):
            I.w=R[0]|R[1]; I.r=set().union(*R[2:])
        elif base=='v_nop': pass
        else:
            I.w=R[0]; I.r=set().union(*R[1:]) if len(R)>1 else set()
            if base in('v_fmac_f32','v_dot2c_f32_bf16','v_writelane_b32') or I.dpp: I.r|=R[0]
            if base=='v_cndmask_b32' and len(ops)==3: I.r|={('s','vcc')}
            if base.startswith('v_dot2'): I.kind='dot'
    elif mn.startswith('ds_'):
        I.kind='ds'
        if mn.startswith(('ds_read','ds_bpermute','ds_permute','ds_swizzle')) or '_rtn' in mn:
            I.w=R[0]; I.r=set().union(*R[1:])
        else: I.r=set().union(*R)
    elif mn.startswith(('buffer_','global_')):
        I.kind='vmem'
        if mn in('buffer_wbl2','buffer_inv'): pass
        elif 'lds' in mods or '_lds_' in mn:
            I.r=set().union(*R)|{('s','m0')}; I.kind='vmemlds'
        elif '_load' in mn:
            I.w=R[0]; I.r=set().union(*R[1:])
        elif '_atomic' in mn:
            I.r=set().union(*R)
            if 'sc0' in mods: I.w=R[0]
        else:
            I.r=set().union(*R)
            if mn.endswith(('x3','x4')): I.storedata=R[0] if mn.startswith('buffer') else R[1]
    elif mn.startswith('s_'):
        I.kind='salu'
        if mn.startswith(('s_load','s_memtime','s_memrealtime','s_buffer_load')):
            I.kind='smem'; I.w=R[0]; I.r=set().union(*R[1:]) if len(R)>1 else set()
        elif mn.startswith(('s_cmp','s_bitcmp','s_waitcnt','s_barrier','s_cbranch','s_branch','s_endpgm','s_sleep','s_setprio')):
            I.r=set().union(*R) if R else set()
        elif 'saveexec' in mn:
            I.w=R[0]|{('s','exec')}; I.r=R[1]|{('s','exec')}
        else:
            I.w=R[0] if R else set(); I.r=set().union(*R[1:]) if len(R)>1 else set()
    return I
ISVALU=('valu','trans','permlane','readlane','dot')
def need(p,c):
    n=0
    vw={x for x in p.w if x[0] in 'va'}
    sw={x for x in p.w if x[0]=='s'}
    if p.kind in ISVALU:
        if c.kind=='mfma':
            if vw&c.r: n=max(n,3 if p.kind=='dot' else 2)
            if ('s','exec') in p.w: n=max(n,4)
        if c.kind in ISVALU:
            if c.dpp and vw&c.r: n=max(n,2)
            if c.dpp and ('s','exec') in p.w: n=max(n,5)
            if c.kind=='permlane' and vw&c.r: n=max(n,2)
            if c.kind=='permlane' and ('s','exec') in p.w: n=max(n,4)
            if c.kind=='readlane' and vw&c.r: n=max(n,1)
            if c.kind=='readlane' and sw&c.r: n=max(n,4)
            if c.kind=='readlane' and ('s','exec') in p.w: n=max(n,4)
            if (sw-{('s','exec')})&c.r: n=max(n,2)
            if p.kind=='trans' and vw&c.r and c.kind!='trans': n=max(n,1)
            if p.kind=='trans' and vw&c.r and c.kind=='trans': n=max(n,1)
            if p.kind=='dot' and vw&(c.r|c.w):
                same = (c.mn==p.mn)
                if not(same and not (vw&(c.r-c.w)) ): n=max(n,3)
            if ('sdwa' in p.mn or any(m.startswith('op_sel') for m in p.mods)) and not p.mn.startswith('v_pk') and vw&(c.r|c.w): n=max(n,1)
        if c.kind in('vmem','vmemlds') and sw&c.r: n=max(n,5)
        if c.kind in('vmem','vmemlds','ds') and p.kind=='dot' and vw&c.r: n=max(n,3)
        if c.kind in('salu','smem') and sw&c.r: n=max(n,1)
    if p.kind=='mfma':
        T={2:5,4:8,8:12}[p.passes]
        if c.kind=='mfma':
            ab=c.r-c.srcC if not (c.srcC & (c.r-c.srcC)) else c.r
            if vw&(c.r-c.srcC): n=max(n,T)
            if vw&c.srcC:
                if c.srcC==p.w and c.passes==p.passes: n=max(n,2 if p.passes==2 else 0)
                else: n=max(n,{2:4,4:6,8:10}[p.passes])
            elif vw&c.w: n=max(n,{2:4,4:6,8:10}[p.passes])
        elif c.kind in ISVALU or c.kind in('ds','vmem','vmemlds'):
            if vw&(c.r|c.w): n=max(n,T)
        if c.kind in ISVALU and p.srcC&c.w: n=max(n,{2:1,4:3,8:7}[p.passes])
    if p.kind=='salu' and ('s','m0') in p.w and c.kind=='vmemlds': n=max(n,1)
    if p.kind=='salu' and ('s','exec') in p.w and c.dpp: n=max(n,1)
    if p.kind=='vmem' and p.storedata and (p.storedata&c.w):
        n=max(n,2 if c.kind in ISVALU or c.kind=='mfma' else 1)
    return n
class K:
    def __init__(self):
        self.out=[]; self.hist=[]
        self.uid=0; self.snap={}
        self.vm=[]; self.vmdone=0
        self.lg=[]; self.lgdone=0
        self.pend={}
        self.nops=0; self.noplog=[]
        self.check=True
    def raw(self,s):
        for l in s.strip('\n').split('\n'): self.out.append(l)
    def c(self,s): self.out.append('    ; '+s)
    def newlabel(self,p='L'):
        self.uid+=1; return '%s_%d'%(p,self.uid)
    def _adv(self,n):
        self.hist=[(i,d+n) for (i,d) in self.hist if d+n<24]
    def label(self,l):
        self.out.append(l+':')
        if l in self.snap:
            for h in self.snap.pop(l):
                self.hist=self.hist+[x for x in h]
    def reset(self):
        self.hist=[]; self.vm=[]; self.vmdone=0; self.lg=[]; self.lgdone=0; self.pend={}
    def e(self,fmt,*a):
        text=fmt%a if a else fmt
        I=parse(text)
        n=0
        for (p,d) in self.hist:
            k=need(p,I)-d
            if k>n: n=k; why=p
        if n>0:
            self.nops+=n; self.noplog.append((n,why.text,text))
            m=n
            while m>0:
                q=min(m,16); self.out.append('    s_nop %d'%(q-1)); m-=q
            self._adv(n)
        if self.check and I.kind not in('nop',):
            for r in (I.r|I.w):
                if r in self.pend:
                    kind,idx=self.pend[r]
                    done=self.vmdone if kind=='vm' else self.lgdone
                    if idx>=done:
                        if r in I.w and r not in I.r and I.kind in(('vmem',) if kind=='vm' else ('ds',)): continue
                        raise RuntimeError('missing waitcnt: %s touches %s pending %s#%d'%(text,r,kind,idx))
                    del self.pend[r]
        self.out.append('    '+text)
        self._adv(I.states)
        self.hist.append((I,0))
        tok=None
        if I.kind in('vmem','vmemlds'):
            tok=len(self.vm); self.vm.append(I)
            for r in I.w: self.pend[r]=('vm',tok)
        elif I.kind=='ds':
            tok=len(self.lg); self.lg.append(I)
            for r in I.w: self.pend[r]=('lg',tok)
        elif I.kind=='smem':
            tok=len(self.lg); self.lg.append(I)
            for r in I.w: self.pend[r]=('lg',tok)
        if I.mn.startswith('s_waitcnt'):
            m=re.search(r'vmcnt\((\d+)\)',text)
            if m: self.vmdone=max(self.vmdone,len(self.vm)-int(m.group(1)))
            m=re.search(r'lgkmcnt\((\d+)\)',text)
            if m: self.lgdone=max(self.lgdone,len(self.lg)-int(m.group(1)))
        if I.mn.startswith(('s_cbranch','s_branch')):
            tgt=text.split()[-1]
            self.snap.setdefault(tgt,[]).append(list(self.hist))
        return tok
    def waitvm(self,tok,lg=None,force=False):
        s=[]
        if tok is not None and (tok>=self.vmdone or force):
            s.append('vmcnt(%d)'%min(63,len(self.vm)-1-tok))
        if lg is not None and (lg>=self.lgdone or force):
            n=len(self.lg)-1-lg
            if any(i.kind=='smem' for i in self.lg[self.lgdone:]): n=0
            s.append('lgkmcnt(%d)'%min(15,n))
        if s: self.e('s_waitcnt '+' '.join(s))
    def waitlg(self,tok): self.waitvm(None,tok)
    def waitall(self): self.e('s_waitcnt vmcnt(0) lgkmcnt(0)')
    def lastvm(self): return len(self.vm)-1
    def lastlg(self): return len(self.lg)-1
    def text(self): return '\n'.join(self.out)+'\n'
```

```python
import sys, gen
opt=eval(sys.argv[2]) if len(sys.argv)>2 else {}
out=sys.argv[1] if len(sys.argv)>1 else 'cdna_kernels/'+gen.NAME+'.s'
g=gen.G(stamps=bool(opt.get('stamps')),opt=opt); s=g.build()
hdr=open('cdna_kernels/'+gen.NAME+'.s.ref').read().split('; Override launch')[0]
open(out,'w').write(hdr+s)
gen.report(g,s)
print(g.names)
```

```python
import sys, struct
from kasm import *
NAME='sequential_preLN__linear_attn_block__geglu_ffn__prompt'
KN=NAME+'_kernel'
def f2u(x): return struct.unpack('<I',struct.pack('<f',x))[0]
WS_EPOCH=0x0
WS_ZF   =0x1000
WS_F1   =0x2000
WS_F2   =0x3000
WS_XC   =0x6000
WS_F3   =0x8000
WS_KV   =0x40000
WS_STAT =0x80000
WS_O    =0x100000
WS_H    =0x340000
WS_A    =0x580000
WS_WGU  =0xB00000
WS_WD   =0xE00000
WS_STAMP=0x1000000
WS_SIZE =0x1100000
OOB=0x7F000000
XNP=1040
L_RING=66560
L_P0=L_RING+65536
L_XR=L_P0+12288
L_MEAN=L_P0+24576
L_WO=0
L_O=65536
L_W=[131072-0,0,32768,65536]
LDS=163840
L_W=[LDS-32768+0,0,32768,65536]
SPIN=400000
SX,SW,SWO,SG,SU,SD,SO,SWS=4,8,12,16,20,24,28,32
sW,sX,sLOC,sHG,sQ,sTB,sN0,sN1=36,37,38,39,40,41,42,43
sC0=44; sTT=45; sHP=46; sW11=47
sSPIN=68; sMASK=69
sWK=8*0+84
sXK=92
STAMP0=70
def srd(k,d,lo,nbytes):
    k.e('s_mov_b32 s%d, s%d',d,lo); k.e('s_and_b32 s%d, s%d, 0xffff',d+1,lo+1); k.e('s_mov_b32 s%d, 0x%x',d+2,nbytes); k.e('s_mov_b32 s%d, 0x00020000',d+3)
def R(b,n=4,p='v'): return '%s[%d:%d]'%(p,b,b+n-1)
vL,vL16,vZ,vN=1,2,3,4
vST=255
vFP,vFG=249,250
class G:
    def __init__(self, stamps=False, stop=None, opt=None):
        self.k=K(); self.stamps=stamps; self.stop=stop; self.nst=0; self.names=[]; self.opt=opt or {}; self.pst=[]
    def stamp(self,name):
        if not self.stamps: return
        if self.opt.get('only') and name not in self.opt['only']: return
        k=self.k
        if len(self.pst)==7: self.flush_stamps()
        i=len(self.pst); k.e('s_memrealtime s[%d:%d]',STAMP0+2*i,STAMP0+2*i+1); self.pst.append(self.nst); self.nst+=1; self.names.append(name)
    def flush_stamps(self):
        k=self.k
        if not self.pst: return
        k.e('s_waitcnt lgkmcnt(0)')
        for i,n in enumerate(self.pst): k.e('v_writelane_b32 v%d, s%d, %d',vST,STAMP0+2*i,n)
        self.pst=[]
    def mfma(self,d,a,b,c=None):
        self.k.e('v_mfma_f32_32x32x16_bf16 %s, %s, %s, %s',d,a,b,c if c is not None else d)
    def m0(self,sr,imm):
        if sr is None: self.k.e('s_mov_b32 m0, %d',imm)
        else: self.k.e('s_add_u32 m0, s%d, %d',sr,imm)
    def dma(self,voff,srd_,soff,flags='',off=0):
        return self.k.e('buffer_load_dwordx4 v%d, s[%d:%d], s%d offen %s%s lds',voff,srd_,srd_+3,soff,('offset:%d '%off) if off else '',flags)
    def wsld(self,dst,voff,soff,off=0,w=4,flags='sc1'):
        return self.k.e('buffer_load_dword%s %s, v%d, s[%d:%d], s%d offen %s%s',{1:'',2:'x2',4:'x4'}[w],dst,voff,SWS,SWS+3,soff,('offset:%d '%off) if off else '',flags)
    def wsst(self,src,voff,soff,off=0,w=4,flags='sc1'):
        return self.k.e('buffer_store_%s %s, v%d, s[%d:%d], s%d offen %s%s',{0:'short',1:'dword',2:'dwordx2',4:'dwordx4'}[w],src,voff,SWS,SWS+3,soff,('offset:%d '%off) if off else '',flags)
    def poll(self,vaddr,sbase,vt):
        k=self.k; e=k.e
        e('s_mov_b32 s%d, 0',sSPIN)
        p=k.newlabel('poll'); k.label(p)
        self.wsld(R(vt,2),vaddr,sbase,w=2)
        e('s_add_u32 s%d, s%d, 1',sSPIN,sSPIN); e('s_cmp_gt_u32 s%d, %d',sSPIN,SPIN); e('s_cbranch_scc1 L_end')
        e('s_waitcnt vmcnt(0)')
        e('v_cmp_ne_u64 vcc, %s, %s',R(vt,2),R(vN,2))
        e('s_cbranch_vccnz %s',p)
    def flag(self,soff):
        k=self.k; e=k.e
        a=k.newlabel('fg'); b=k.newlabel('fe')
        e('s_mov_b64 exec, 1')
        e('s_cmp_eq_u32 s%d, 0',sLOC); e('s_cbranch_scc1 %s',a)
        self.wsst(R(vN,2),vZ,soff,w=2,flags='')
        e('s_branch %s',b)
        k.label(a); k.vm.pop()
        t=self.wsst(R(vN,2),vZ,soff,w=2)
        k.label(b)
        e('s_mov_b64 exec, -1')
        return t
    def pipe(self,n,L,reads,mf,bar=None,fill=None,wait_every=1):
        k=self.k; tok={}
        for j in range(min(L,n)):
            if bar: bar(j)
            tok[j]=reads(j)
        for j in range(n):
            if j%wait_every==0: k.waitlg(tok[min(n-1,j+wait_every-1)])
            mf(j)
            if j+L<n:
                if bar: bar(j+L)
                tok[j+L]=reads(j+L)
            if fill: fill(j)
    def flag2(self,soff,off=0):
        self.wsst(R(vN,2),vFP,soff,off=off,w=2,flags='')
        return self.wsst(R(vN,2),vFG,soff,off=off,w=2)
    def bfround(self,v,t):
        e=self.k.e
        e('v_cvt_pk_bf16_f32 v%d, v%d, v%d',t,v,v); e('v_lshlrev_b32 v%d, 16, v%d',v,t)
    def build(self):
        k=self.k; e=k.e
        k.raw('.text\n.globl %s\n.p2align 8\n.type %s,@function\n%s:'%(KN,KN,KN))
        self.stamp('start')
        e('s_load_dwordx4 s[48:51], s[0:1], 0')
        e('s_load_dwordx2 s[64:65], s[0:1], 72')
        e('s_load_dwordx2 s[52:53], s[0:1], 16')
        e('s_load_dwordx4 s[56:59], s[0:1], 32')
        e('s_load_dwordx4 s[60:63], s[0:1], 48')
        e('s_cmp_ge_u32 s2, 256'); e('s_cbranch_scc1 L_end')
        e('v_lshrrev_b32 v6, 6, v0'); e('v_and_b32 v%d, 63, v0',vL); e('v_readfirstlane_b32 s%d, v6',sW)
        e('s_and_b32 s%d, s2, 7',sX); e('s_lshr_b32 s66, s2, 3')
        e('s_and_b32 s%d, s66, 7',sHG); e('s_lshr_b32 s%d, s66, 3',sQ)
        e('s_lshl_b32 s%d, s%d, 2',sTB,sX); e('s_add_u32 s%d, s%d, s%d',sTB,sTB,sQ)
        self.p1_start()
        self.p1()
        if self.stop!='p1':
            self.p2()
            if self.stop!='p2':
                self.p3()
                if self.stop!='p3': self.p4()
        else:
            self.poll_o(); self.epoch()
        self.stamp('end')
        if self.stamps:
            self.flush_stamps()
            e('s_waitcnt vmcnt(0)')
            e('s_lshl_b32 s48, s2, 2'); e('s_add_u32 s48, s48, s%d',sW); e('s_lshl_b32 s48, s48, 7'); e('s_add_u32 s48, s48, %d',WS_STAMP)
            e('v_lshlrev_b32 v6, 2, v%d',vL); e('s_mov_b64 exec, 0xffffffff')
            self.wsst('v%d'%vST,6,48,w=1,flags='')
            if self.opt.get('dbg') is not None:
                e('s_load_dwordx2 s[52:53], s[0:1], 64'); e('s_waitcnt lgkmcnt(0)')
                srd(k,56,52,256)
                e('v_readlane_b32 s60, v%d, 0',vST); e('s_nop 1'); e('v_subrev_u32 v7, s60, v%d',vST)
                e('s_cmp_eq_u32 s2, %d',self.opt['dbg']); e('s_cselect_b32 s61, 0, 0x%x',OOB); e('s_cmp_eq_u32 s%d, 0',sW); e('s_cselect_b32 s61, s61, 0x%x',OOB)
                e('buffer_store_dword v7, v6, s[56:59], s61 offen')
        k.label('L_end'); e('s_endpgm')
        hdr='; @launch grid=(256,1,1) block=(256,1,1) lds=%d\n.amdgcn_target "amdgcn-amd-amdhsa--gfx950"\n'%LDS
        desc='''.section .rodata,"a"
.p2align 6
.amdhsa_kernel %s
  .amdhsa_next_free_vgpr 512
  .amdhsa_next_free_sgpr 102
  .amdhsa_accum_offset 256
  .amdhsa_group_segment_fixed_size 0
  .amdhsa_kernarg_size 80
  .amdhsa_user_sgpr_count 2
  .amdhsa_user_sgpr_kernarg_segment_ptr 1
  .amdhsa_system_sgpr_workgroup_id_x 1
.end_amdhsa_kernel
'''%KN
        return hdr+k.text()+desc
    def p1_start(self):
        k=self.k; e=k.e
        self.tx={}; self.tw={}
        e('v_lshrrev_b32 v24, 4, v%d',vL); e('v_and_b32 v25, 15, v%d',vL); e('v_lshlrev_b32 v25, 4, v25')
        e('v_lshl_add_u32 v6, v24, 10, v25')
        e('s_lshl_b32 s54, s%d, 2',sTB); e('s_add_u32 s54, s54, s%d',sW); e('s_lshl_b32 s54, s54, 14')
        for g in range(4):
            e('s_add_u32 s66, s%d, %d',sHG,g); e('s_and_b32 s%d, s66, 3',sXK+4+g)
        e('s_lshl_b32 s66, s%d, 12',sXK+4); e('s_add_u32 s55, s54, s66')
        e('v_and_b32 v26, 1, v24'); e('v_lshlrev_b32 v26, 2, v26'); e('v_and_b32 v27, 7, v%d',vL); e('v_xor_b32 v27, v27, v26'); e('v_lshlrev_b32 v27, 4, v27')
        e('v_lshrrev_b32 v26, 3, v%d',vL)
        e('v_mul_u32_u24 v16, 3072, v26'); e('v_add_u32 v16, v16, v27')
        e('s_mul_i32 s66, s%d, %d',sW,16*3072); e('s_lshl_b32 s67, s%d, 7',sHG); e('s_add_u32 s66, s66, s67')
        e('v_add_u32 v16, s66, v16')
        e('s_lshl_b32 s%d, s%d, 1',sC0,sQ); e('s_and_b32 s66, s%d, 1',sX); e('s_add_u32 s%d, s%d, s66',sC0,sC0)
        e('s_mul_i32 s%d, s%d, %d',sWK,sC0,64*3072)
        e('s_lshl_b32 s%d, s%d, 11',sW11,sW)
        e('v_add_u32 v8, 1024, v16'); e('v_add_u32 v9, %d, v16',1024+8*3072); e('v_add_u32 v14, 2048, v16'); e('v_add_u32 v15, %d, v16',2048+8*3072)
        e('s_waitcnt lgkmcnt(0)')
        e('s_load_dwordx2 s[%d:%d], s[64:65], %d',sN0,sN1,WS_EPOCH)
        srd(k,SX,48,2048*1024)
        for i in range(4): self.tx[0]=e('buffer_load_dwordx4 %s, v6, s[%d:%d], s55 offen offset:%d',R(64+4*i),SX,SX+3,256*i)
        srd(k,SW,50,512*3072)
        for f in self.wdma(0): f[0](); e('s_nop 0'); f[1]()
        for g in (1,2,3):
            e('s_lshl_b32 s66, s%d, 12',sXK+4+g); e('s_add_u32 s55, s54, s66')
            for i in range(4): self.tx[g]=e('buffer_load_dwordx4 %s, v6, s[%d:%d], s55 offen offset:%d',R(64+16*g+4*i),SX,SX+3,256*i)
            if g==1: self.consts()
        self.stamp('issued')
    def consts(self):
        k=self.k; e=k.e
        srd(k,SWS,64,WS_SIZE); srd(k,SWO,52,512*1024); srd(k,SG,56,512*2752); srd(k,SU,58,512*2752); srd(k,SD,60,1376*1024); srd(k,SO,62,2048*1024)
        e('v_lshlrev_b32 v%d, 4, v%d',vL16,vL); e('v_mov_b32 v%d, 0',vZ)
        e('s_and_b32 s%d, s%d, 1',sTT,sW); e('s_lshr_b32 s%d, s%d, 1',sHP,sW)
        e('s_mov_b32 s%d, 0xffff0000',sMASK)
        e('v_add_u32 v17, %d, v16',8*3072)
        e('v_lshl_add_u32 v11, v26, 10, v27')
        e('v_mul_u32_u24 v12, 2752, v26'); e('v_add_u32 v12, v12, v27')
        e('s_mul_i32 s66, s%d, %d',sTB,16*3072); e('s_mul_i32 s67, s%d, 6144',sHG); e('s_add_u32 s66, s66, s67'); e('s_mul_i32 s67, s%d, 1536',sW); e('s_add_u32 s66, s66, s67'); e('s_add_u32 s66, s66, %d',WS_KV)
        e('s_cmp_lt_u32 s%d, 2',sTB); e('s_cselect_b32 s66, s66, 0x%x',OOB)
        for i in range(28,32): e('v_mov_b32 v%d, 0',i)
        e('v_lshlrev_b32 v23, 3, v%d',vL)
        self.wsst(R(28),vL16,66); self.tzero=self.wsst(R(28,2),23,66,off=1024,w=2)
        e('v_mul_u32_u24 v7, %d, v24',XNP); e('v_add_u32 v7, v7, v25')
        e('s_mul_i32 s67, s%d, %d',sW,16*XNP); e('v_add_u32 v7, s67, v7')
        for g in (1,2,3,0):
            e('s_mul_i32 s66, s%d, %d',sXK+4+g,4*XNP); e('v_add_u32 v%d, s66, v7',7 if g==0 else 39+g)
        e('s_lshl_b32 s66, s%d, 6',sW); e('s_add_u32 s66, s66, %d',L_MEAN); e('v_lshl_add_u32 v43, v24, 2, s66')
        for g in range(4): e('s_lshl_b32 s%d, s%d, 4',56+g,sXK+4+g)
        for c in range(1,8):
            e('s_add_u32 s66, s%d, %d',sC0,c); e('s_and_b32 s66, s66, 7'); e('s_mul_i32 s%d, s66, %d',sWK+c,64*3072)
        e('v_bfe_u32 v24, v%d, 2, 2',vL); e('v_bfe_u32 v25, v%d, 1, 1',vL); e('v_bfe_u32 v26, v%d, 4, 1',vL)
        e('v_lshl_add_u32 v25, v26, 1, v25')
        e('v_bfe_u32 v26, v%d, 3, 1',vL); e('v_lshlrev_b32 v26, 2, v26')
        e('v_lshlrev_b32 v24, 7, v24'); e('v_and_b32 v27, 1, v%d',vL); e('v_lshl_add_u32 v24, v27, 3, v24')
        e('v_lshrrev_b32 v27, 5, v%d',vL)
        e('s_lshl_b32 s66, s%d, 2',sHP)
        e('v_add_u32 v28, s66, v25'); e('v_xor_b32 v28, v28, v26'); e('v_lshl_add_u32 v28, v28, 4, v24')
        e('v_lshl_add_u32 v18, v27, 10, v28'); e('v_add_u32 v18, %d, v18',L_RING)
        e('v_lshl_add_u32 v13, v27, 9, v28')
        e('v_bfe_u32 v29, v%d, 1, 1',vL); e('v_xor_b32 v29, v29, v26'); e('v_lshl_add_u32 v29, v29, 4, v24'); e('v_lshl_add_u32 v29, v27, 9, v29')
        e('v_bfe_u32 v20, v%d, 4, 1',vL); e('v_lshl_add_u32 v20, v20, 11, v29')
        e('v_xor_b32 v21, v25, v26'); e('v_lshl_add_u32 v21, v21, 4, v24'); e('v_lshl_add_u32 v21, v27, 9, v21')
        e('s_mul_i32 s66, s%d, 6144',sW); e('s_add_u32 s66, s66, %d',L_P0)
        e('v_add_u32 v20, s66, v20'); e('v_add_u32 v21, s66, v21')
        e('v_and_b32 v28, 31, v%d',vL); e('s_lshl_b32 s66, s%d, 5',sTT); e('v_add_u32 v28, s66, v28')
        e('v_mul_u32_u24 v10, %d, v28',XNP); e('v_lshl_add_u32 v10, v27, 4, v10')
        e('v_bfe_u32 v29, v28, 1, 3'); e('s_lshl_b32 s66, s%d, 2',sHP); e('v_xor_b32 v29, s66, v29'); e('v_lshlrev_b32 v29, 4, v29')
        e('v_lshl_add_u32 v19, v28, 7, v29'); e('v_lshl_add_u32 v19, v27, 3, v19'); e('v_add_u32 v19, %d, v19',L_XR)
        e('v_lshl_add_u32 v44, v28, 2, 0'); e('v_add_u32 v44, %d, v44',L_MEAN)
        e('v_mov_b32 v22, 0x3f803f80')
        e('s_waitcnt lgkmcnt(0)')
        e('s_mul_i32 s%d, s%d, 1664525',sN0,sN0); e('s_add_u32 s%d, s%d, 1013904223',sN0,sN0)
        e('s_mul_i32 s%d, s%d, 22695477',sN1,sN1); e('s_add_u32 s%d, s%d, 0x3c6ef35f',sN1,sN1)
        e('v_mov_b32 v%d, s%d',vN,sN0); e('v_mov_b32 v%d, s%d',vN+1,sN1)
        e('s_getreg_b32 s%d, hwreg(HW_REG_XCC_ID, 0, 4)',sLOC)
        e('v_mov_b32 v28, s%d',sN0); e('v_mov_b32 v29, s%d',sN1); e('v_mov_b32 v30, s%d',sLOC)
        e('s_lshr_b32 s66, s2, 3'); e('s_lshl_b32 s67, s%d, 5',sX); e('s_add_u32 s66, s66, s67'); e('s_lshl_b32 s66, s66, 4'); e('s_add_u32 s66, s66, %d',WS_XC)
        e('s_cmp_eq_u32 s%d, 0',sW); e('s_cselect_b32 s66, s66, 0x%x',OOB)
        e('s_mov_b64 exec, 1'); self.wsst(R(28),vZ,66); e('s_mov_b64 exec, -1')
    def wdma(self,c):
        out=[]; slot=L_RING+(c%4)*16384
        for m in range(2):
            for h in range(2):
                v=[[8,9],[14,15]][m][h] if c<8 else [16,17][h]
                s=sWK+(c if c<8 else 2*(c-8)+m)
                def f0(m=m,h=h): self.m0(sW11,slot+m*8192+h*1024)
                def f1(v=v,s=s): self.tw[c]=self.dma(v,SW,s)
                out.append((f0,f1))
        return out
    def p0_issue(self):
        k=self.k; e=k.e
        e('s_lshl_b32 s60, s%d, 2',sHG); e('s_add_u32 s60, s60, s%d',sW)
        e('s_mul_i32 s61, s60, 96'); e('s_mul_i32 s62, s%d, %d',sTB,16*2752); e('s_add_u32 s61, s61, s62')
        e('s_cmp_lt_u32 s60, 29'); e('s_cselect_b32 s61, s61, 0x%x',OOB); e('s_add_u32 s62, s61, %d',8*2752)
        e('s_mul_i32 s63, s%d, 6144',sW)
        e('s_lshl_b32 s64, s2, 2'); e('s_add_u32 s64, s64, s%d',sW)
        e('s_lshr_b32 s65, s64, 3'); e('s_lshl_b32 s65, s65, 14'); e('s_and_b32 s66, s64, 7'); e('s_lshl_b32 s66, s66, 7'); e('s_add_u32 s65, s65, s66')
        e('s_cmp_lt_u32 s64, 688'); e('s_cselect_b32 s65, s65, 0x%x',OOB)
        e('s_lshl_b32 s52, s%d, 1',sTB); e('s_add_u32 s52, s52, s%d',sTT); e('s_lshl_b32 s53, s%d, 6',sHG); e('s_add_u32 s53, s53, s52'); e('s_lshl_b32 s53, s53, 10')
        e('s_lshr_b32 s67, s52, 5'); e('s_cmp_eq_u32 s67, s%d',sHP); e('s_cselect_b32 s53, s53, 0x%x',OOB)
        self.m0(63,L_P0); e('s_add_u32 s66, s65, 8192'); self.dma(12,SG,61,'nt')
        self.m0(63,L_P0+1024); self.twb=e('buffer_load_dwordx4 v[60:63], v%d, s[%d:%d], s53 offen',vL16,SWO,SWO+3); self.dma(12,SG,62,'nt')
        for (v,sr,so,l) in ((12,SU,61,2048),(12,SU,62,3072),(11,SD,65,4096),(11,SD,66,5120)):
            self.m0(63,L_P0+l); e('s_nop 0'); self.tp0=self.dma(v,sr,so,'nt')
    def p0_finish(self):
        k=self.k; e=k.e
        B=128
        e('v_xor_b32 v24, 32, v20'); e('v_xor_b32 v25, 64, v20'); e('v_xor_b32 v26, 64, v21')
        k.waitvm(self.tp0)
        for f in range(3):
            for t in range(2): e('ds_read_b64_tr_b16 %s, v%d offset:%d',R(B+4*f+2*t,2),[20,24,25][f],t*1024)
        for ct in range(2):
            for t in range(2): last=e('ds_read_b64_tr_b16 %s, v%d offset:%d',R(B+12+4*ct+2*t,2),26 if ct else 21,4096+t*1024)
        e('s_mul_i32 s61, s60, %d',3*32768); e('s_lshl_b32 s62, s%d, 10',sTB); e('s_add_u32 s61, s61, s62'); e('s_add_u32 s61, s61, %d',WS_WGU)
        e('s_cmp_lt_u32 s60, 29'); e('s_cselect_b32 s61, s61, 0x%x',OOB); e('s_add_u32 s62, s61, 32768'); e('s_add_u32 s63, s61, 65536')
        e('s_cmp_lt_u32 s60, 28'); e('s_cselect_b32 s63, s63, 0x%x',OOB)
        e('s_lshr_b32 s65, s64, 3'); e('s_and_b32 s66, s64, 7'); e('s_mul_i32 s66, s66, 172'); e('s_add_u32 s65, s65, s66'); e('s_lshl_b32 s65, s65, 10'); e('s_add_u32 s65, s65, %d',WS_WD)
        e('s_cmp_lt_u32 s64, 688'); e('s_cselect_b32 s65, s65, 0x%x',OOB); e('s_add_u32 s66, s65, %d',86*1024)
        e('v_dot2_f32_bf16 v45, v60, v22, 0'); e('v_dot2_f32_bf16 v46, v61, v22, 0'); e('v_dot2_f32_bf16 v45, v62, v22, v45'); e('v_dot2_f32_bf16 v46, v63, v22, v46')
        k.waitlg(last)
        for f in range(3): self.wsst(R(B+4*f),vL16,61+f)
        e('v_add_f32 v45, v45, v46')
        self.wsst(R(B+12),vL16,65); self.tp0st=self.wsst(R(B+16),vL16,66)
        for r in (8,4,2,1): e('v_add_f32_dpp v45, v45, v45 row_ror:%d row_mask:0xf bank_mask:0xf',r)
        e('v_mov_b32 v46, v45'); e('v_permlane16_swap_b32 v45, v46'); e('v_add_f32 v45, v45, v46')
        e('v_mov_b32 v46, v45'); e('v_permlane32_swap_b32 v45, v46'); e('v_add_f32 v45, v45, v46')
        e('v_mul_f32 v45, 0x%x, v45',f2u(1/512.))
    def ln(self,hooks):
        k=self.k; e=k.e
        for g in range(4):
            X=64+16*g; k.waitvm(self.tx[g])
            for j in range(16):
                s,q=(48+2*g,49+2*g) if j&1==0 else (24,25)
                if j<2:
                    e('v_dot2_f32_bf16 v%d, v%d, v22, 0',s,X+j); e('v_dot2_f32_bf16 v%d, v%d, v%d, 0',q,X+j,X+j)
                else:
                    e('v_dot2_f32_bf16 v%d, v%d, v22, v%d',s,X+j,s); e('v_dot2_f32_bf16 v%d, v%d, v%d, v%d',q,X+j,X+j,q)
            if g in hooks: hooks[g]()
            else: e('s_nop 1')
            e('v_pk_add_f32 %s, %s, v[24:25]',R(48+2*g,2),R(48+2*g,2))
        for r in (8,4,2,1):
            for j in range(8): e('v_add_f32_dpp v%d, v%d, v%d row_ror:%d row_mask:0xf bank_mask:0xf',48+j,48+j,48+j,r)
        e('v_mov_b32 v28, 0x%x',f2u(1/512.))
        for g in range(4): e('v_pk_mul_f32 %s, %s, v[28:29] op_sel_hi:[1,0]',R(48+2*g,2),R(48+2*g,2))
        S=[48,50,52,54]; Q=[49,51,53,55]
        for g in range(4): e('v_fma_f32 v%d, -v%d, v%d, v%d',Q[g],S[g],S[g],Q[g])
        for g in range(4):
            e('v_add_u32 v23, s%d, v43',56+g); e('ds_write_b32 v23, v%d',S[g])
        for g in range(4): e('v_max_f32 v%d, 0, v%d',Q[g],Q[g])
        for g in range(0,4,2): e('v_cvt_pk_bf16_f32 v%d, v%d, v%d',24+g//2,Q[g],Q[g+1])
        for g in range(0,4,2): e('v_lshlrev_b32 v%d, 16, v%d',Q[g],24+g//2); e('v_and_b32 v%d, s%d, v%d',Q[g+1],sMASK,24+g//2)
        for g in range(4): e('v_add_f32 v%d, 0x%x, v%d',Q[g],f2u(1e-5),Q[g])
        for g in range(0,4,2): e('v_cvt_pk_bf16_f32 v%d, v%d, v%d',24+g//2,Q[g],Q[g+1])
        for g in range(0,4,2): e('v_lshlrev_b32 v%d, 16, v%d',Q[g],24+g//2); e('v_and_b32 v%d, s%d, v%d',Q[g+1],sMASK,24+g//2)
        for g in range(4): e('v_sqrt_f32 v%d, v%d',Q[g],Q[g])
        for g in range(0,4,2): e('v_cvt_pk_bf16_f32 v%d, v%d, v%d',26+g//2,S[g],S[g+1])
        for g in range(0,4,2): e('v_cvt_pk_bf16_f32 v%d, v%d, v%d',24+g//2,Q[g],Q[g+1])
        for g in range(0,4,2): e('v_lshlrev_b32 v%d, 16, v%d',S[g],26+g//2); e('v_and_b32 v%d, s%d, v%d',S[g+1],sMASK,26+g//2)
        for g in range(0,4,2): e('v_lshlrev_b32 v%d, 16, v%d',Q[g],24+g//2); e('v_and_b32 v%d, s%d, v%d',Q[g+1],sMASK,24+g//2)
        for g in range(4): e('v_rcp_f32 v%d, v%d',Q[g],Q[g])
        e('s_nop 0')
        for g in range(4): e('v_mul_f32_e64 v%d, -v%d, v%d',S[g],S[g],Q[g])
        self.stamp('stats')
        for g in range(4):
            X=64+16*g
            for i in range(4):
                for j in range(4):
                    x=X+4*i+j; t=24+2*j
                    e('v_lshlrev_b32 v%d, 16, v%d',t,x); e('v_and_b32 v%d, s%d, v%d',t+1,sMASK,x)
                for j in range(4):
                    t=24+2*j
                    e('v_pk_fma_f32 %s, %s, %s, %s op_sel:[0,1,0] op_sel_hi:[1,1,0]',R(t,2),R(t,2),R(48+2*g,2),R(48+2*g,2))
                for j in range(4): e('v_cvt_pk_bf16_f32 v%d, v%d, v%d',X+4*i+j,24+2*j,25+2*j)
                e('ds_write_b128 v%d, %s offset:%d',7 if g==0 else 39+g,R(X+4*i),256*i)
            if 4+g in hooks: hooks[4+g]()
    def phi(self,src,n,dst,t):
        e=self.k.e
        e('v_mov_b32 v28, 0x%x',f2u(1.4426950408889634)); e('v_mov_b32 v30, 0x%x',f2u(1e-6))
        for j in range(0,n,2): e('v_pk_mul_f32 %s, %s, v[28:29] op_sel_hi:[1,0]',R(t+j,2),R(src+j,2))
        for j in range(n):
            e('v_exp_f32_e64 v%d, v%d clamp',t+j,t+j); e('v_max_f32 v%d, 0, v%d',src+j,src+j)
        for j in range(0,n,2): e('v_pk_add_f32 %s, %s, v[30:31] op_sel_hi:[1,0]',R(src+j,2),R(src+j,2))
        for j in range(0,n,2): e('v_pk_add_f32 %s, %s, %s',R(t+j,2),R(t+j,2),R(src+j,2))
        for j in range(0,n,2): e('v_cvt_pk_bf16_f32 v%d, v%d, v%d',dst+j//2,t+j,t+j+1)
    def p1(self):
        k=self.k; e=k.e; tw=self.tw
        def W(c):
            def f():
                for a,b in self.wdma(c): a(); e('s_nop 0'); b()
            return f
        def zf():
            k.waitvm(self.tzero)
            e('s_lshl_b32 s52, s%d, 1',sHG); e('s_add_u32 s52, s52, s%d',sTB); e('s_lshl_b32 s52, s52, 3'); e('s_add_u32 s52, s52, s%d',sW); e('s_lshl_b32 s52, s52, 3'); e('s_add_u32 s52, s52, %d',WS_ZF)
            e('s_cmp_lt_u32 s%d, 2',sTB); e('s_cselect_b32 s52, s52, 0x%x',OOB)
            e('s_mov_b64 exec, 1'); self.wsst(R(vN,2),vZ,52,w=2); e('s_mov_b64 exec, -1')
        def xk():
            for c in range(8):
                e('s_add_u32 s66, s%d, %d',sC0,c); e('s_and_b32 s66, s66, 7'); e('s_lshl_b32 s%d, s66, 7',sXK+c)
        if self.opt.get('nop0'):
            self.ln({0:W(1),1:W(2),2:lambda:(zf(),W(3)()), 4:xk})
            self.stamp('lndone'); self.tp0st=self.tzero
        else:
            pp=self.opt.get('p0at',0)
            hk={2:[zf],4:[xk],5:[W(1)],7:[W(2),W(3)]}
            hk.setdefault(pp,[]).append(self.p0_issue)
            if self.opt.get('w1at') is not None: hk[5]=[]; hk.setdefault(self.opt['w1at'],[]).append(W(1))
            self.ln({g:(lambda fs=fs:[f() for f in fs]) for g,fs in hk.items()})
            self.stamp('lndone')
            self.p0_finish()
        AK,AV,AQ=192,208,224
        WF=[32,24]
        k.waitvm(tw[0],k.lastlg()); e('s_barrier')
        self.stamp('kv0')
        e('v_lshrrev_b32 v46, 4, v%d',vL); e('v_and_b32 v47, 7, v%d',vL); e('v_xor_b32 v47, v47, v46'); e('v_lshrrev_b32 v46, 3, v%d',vL); e('v_lshlrev_b32 v46, 10, v46'); e('v_lshl_add_u32 v46, v47, 4, v46')
        e('v_xor_b32 v47, 64, v46')
        e('s_lshl_b32 s52, s%d, 7',sHG); e('s_add_u32 s52, s52, s54'); e('s_add_u32 s53, s52, 8192')
        pend=[(lambda:self.m0(sW11,L_XR),lambda:self.dma(46,SX,52)),(lambda:self.m0(sW11,L_XR+1024),lambda:setattr(self,'txr',self.dma(47,SX,53)))]
        def kreads(j):
            n=j>>1; c,s=n>>2,n&3; slot=(c%4)*16384; b=WF[n&1]+4*(j&1)
            if j&1==0:
                if s==0: e('v_add_u32 v23, s%d, v10',sXK+c)
                e('ds_read_b128 %s, v23 offset:%d',R(4*n,4,'a'),32*s)
            for t in range(2): last=e('ds_read_b64_tr_b16 %s, v18 offset:%d',R(b+2*t,2),slot+(j&1)*8192+s*2048+t*512)
            return last
        def kbar(j):
            if j%8==0 and j>0:
                c=j>>3
                k.waitvm(tw[c]); e('s_barrier')
                if c>=2: pend.extend(self.wdma(c+2))
        st={}
        def kmf(j):
            n=j>>1
            if j&1 and pend: st['p']=pend.pop(0); st['p'][0]()
            self.mfma(R(AV if j&1 else AK,16),R(4*n,4,'a'),R(WF[n&1]+4*(j&1)),'0' if n==0 else None)
            if st.get('p'): st.pop('p')[1]()
        def kfill(j):
            if j&1==0: return
            c,s=j>>3,(j>>1)&3
            if c==5 and s==0:
                e('s_lshl_b32 s52, s%d, 1',sHG); e('s_and_b32 s53, s%d, 1',sTB); e('s_add_u32 s52, s52, s53'); e('s_lshl_b32 s52, s52, 6'); e('s_add_u32 s60, s52, %d',WS_ZF)
                e('v_and_b32 v46, 3, v%d',vL); e('v_lshlrev_b32 v46, 3, v46')
                e('s_lshl_b32 s61, s%d, 9',sX); e('s_add_u32 s61, s61, %d',WS_XC); e('v_and_b32 v47, 0x1f0, v%d',vL16)
                self.wsld(R(60,2),46,60,w=2); self.tz=self.wsld(R(56),47,61)
            if c==6 and s==0:
                e('s_mul_i32 s52, s%d, 6144',sTT); e('s_mul_i32 s53, s%d, 3072',sHP); e('s_add_u32 s52, s52, s53'); e('s_add_u32 s52, s52, %d',L_P0)
                e('v_add_u32 v40, s52, v%d',vL16)
                e('v_bfe_u32 v41, v%d, 2, 1',vL); e('v_lshlrev_b32 v41, 5, v41'); e('v_and_b32 v42, 0x13, v%d',vL); e('v_add_u32 v41, v41, v42')
            if c==6 and s==1:
                e('v_bfe_u32 v42, v%d, 3, 1',vL); e('v_lshl_add_u32 v41, v42, 2, v41'); e('v_lshrrev_b32 v42, 5, v%d',vL); e('v_lshl_add_u32 v41, v42, 3, v41')
                e('v_lshlrev_b32 v41, 4, v41'); e('v_add_u32 v41, s52, v41')
                e('s_lshl_b32 s53, s%d, 1',sTB); e('s_add_u32 s53, s53, s%d',sTT); e('s_and_b32 s53, s53, 31'); e('s_add_u32 s53, s53, 32')
            if c==6 and s==2:
                e('v_cmp_eq_u32 s[62:63], s53, v%d',vL); e('v_cmp_gt_u32 s[64:65], 32, v%d',vL)
                e('s_mul_i32 s52, s%d, 1536',sW); e('s_add_u32 s53, s52, %d',L_P0); e('v_lshlrev_b32 v42, 2, v%d',vL); e('v_add_u32 v43, s53, v42')
                e('v_cndmask_b32 v45, 0, v45, s[62:63]')
            if c==6 and s==3:
                e('s_and_b32 s53, s%d, 1',sTB); e('s_mul_i32 s53, s53, %d',16*3072); e('s_mul_i32 s55, s%d, 6144',sHG); e('s_add_u32 s53, s53, s55'); e('s_add_u32 s53, s53, s52'); e('s_add_u32 s55, s53, %d',WS_KV)
            if c==7 and s==0:
                for i in range(4): e('v_mov_b32 v%d, v22',144+i)
                for g in range(3): e('v_mov_b32 v%d, 0.5',128+4*g+3)
                e('v_and_b32 v23, 16, v%d',vL) if False else None
        self.pipe(64,3,kreads,kmf,kbar,kfill)
        for a,b in pend: a(); e('s_nop 0'); b()
        self.stamp('kvdone')
        e('s_mov_b32 vcc_lo, 0xffff0000'); e('s_mov_b32 vcc_hi, 0xffff0000')
        PK,PV,TM=48,32,160
        for j in range(8): e('v_cvt_pk_bf16_f32 v%d, v%d, v%d',PV+j,AV+2*j,AV+2*j+1)
        self.phi(AK,16,PK,TM)
        KVA,ZA=160,176
        self.mfma(R(KVA,16),R(PK),R(PV),'0'); self.mfma(R(ZA,16),R(144),R(PK),'0')
        self.mfma(R(KVA,16),R(PK+4),R(PV+4)); self.mfma(R(ZA,16),R(144),R(PK+4))
        Lp=k.newlabel('zp'); Lo=k.newlabel('zo')
        k.waitvm(self.tz)
        e('s_mov_b32 s%d, 0',sSPIN)
        k.label(Lp)
        e('v_cmp_ne_u64 s[52:53], v[60:61], %s',R(vN,2)); e('v_cmp_ne_u64 s[62:63], v[56:57], %s',R(vN,2)); e('s_or_b64 s[52:53], s[52:53], s[62:63]')
        e('s_cbranch_scc0 %s',Lo)
        e('s_add_u32 s%d, s%d, 1',sSPIN,sSPIN); e('s_cmp_gt_u32 s%d, %d',sSPIN,SPIN); e('s_cbranch_scc1 L_end')
        sv=(list(k.vm),k.vmdone,dict(k.pend))
        self.wsld(R(60,2),46,60,w=2); self.wsld(R(56),47,61); e('s_waitcnt vmcnt(0)'); e('s_branch %s',Lp)
        k.vm,k.vmdone,k.pend=sv
        k.label(Lo)
        e('v_cmp_ne_u32 s[52:53], s%d, v58',sLOC); e('s_cmp_eq_u64 s[52:53], 0'); e('s_cselect_b32 s%d, 1, 0',sLOC)
        e('s_cselect_b32 s52, 0, 0x%x',OOB); e('s_cselect_b32 s53, 0x%x, 0',OOB)
        e('v_mov_b32 v%d, 0x%x',vFP,OOB); e('v_mov_b32 v%d, 0x%x',vFG,OOB); e('v_writelane_b32 v%d, s52, 0',vFP); e('v_writelane_b32 v%d, s53, 0',vFG)
        S=128
        for j in range(8): e('v_cndmask_b32 v%d, v%d, v%d, vcc',S+4*(j//3)+j%3,KVA+j,KVA+8+j)
        e('v_cndmask_b32 v45, v45, v%d, s[64:65]',ZA)
        for g in range(3): e('ds_write_b128 v40, %s offset:%d',R(S+4*g),1024*g)
        e('ds_write_b32 v41, v45 offset:%d',2048+8)
        k.waitvm(self.txr,k.lastlg()); e('s_barrier')
        for i in range(6): last=e('ds_read2st64_b32 %s, v43 offset0:%d offset1:%d',R(S+2*i,2),i,i+24)
        for a,b in self.wdma(10)+self.wdma(11): a(); e('s_nop 0'); b()
        k.waitvm(self.tp0st,last)
        for i in range(6): e('v_add_f32 v%d, v%d, v%d',S+2*i,S+2*i,S+2*i+1)
        for i in range(6): e('buffer_atomic_add_f32 v%d, v42, s[%d:%d], s55 offen offset:%d',S+2*i,SWS,SWS+3,256*i)
        self.stamp('atom')
        XR=240
        for q in range(4):
            if q: e('v_xor_b32 v23, %d, v19',16*q)
            e('ds_read_b64 %s, v%d',R(XR+2*q,2),23 if q else 19)
        e('ds_read_b32 v248, v44')
        QB=[32,36,24,28]
        def qreads(j):
            c,s=8+(j>>3),j&7; slot=(c%4)*16384
            for t in range(2): last=e('ds_read_b64_tr_b16 %s, v18 offset:%d',R(QB[j&3]+2*t,2),slot+(s>>2)*8192+(s&3)*2048+t*512)
            return last
        def qbar(j):
            if j==0: k.waitvm(tw[9]); e('s_barrier')
            if j==16: k.waitvm(tw[11]); e('s_barrier')
        def qfill(n):
            if n==2:
                e('s_lshl_b32 s52, s%d, 1',sHG); e('s_add_u32 s52, s52, s%d',sHP); e('s_mul_i32 s52, s52, 3072'); e('s_add_u32 s52, s52, %d',WS_KV); e('s_add_u32 s53, s52, %d',16*3072)
            if n==4:
                e('s_lshl_b32 s60, s%d, 1',sTB); e('s_add_u32 s60, s60, s%d',sTT); e('s_mul_i32 s60, s60, %d',33*1024); e('s_add_u32 s60, s60, %d',WS_O)
            if n==6:
                e('s_lshl_b32 s61, s%d, 1',sHG); e('s_add_u32 s61, s61, s%d',sHP); e('s_lshl_b32 s62, s61, 11'); e('s_add_u32 s62, s62, s60')
            if n==8:
                e('s_lshl_b32 s63, s61, 6'); e('v_lshlrev_b32 v47, 1, v%d',vL)
            if n==10:
                e('s_add_u32 s63, s63, s60'); e('s_add_u32 s63, s63, 32768')
                e('s_lshl_b32 s64, s%d, 3',sTB); e('s_add_u32 s64, s64, s%d',sHG); e('s_lshl_b32 s64, s64, 3'); e('s_add_u32 s64, s64, %d',WS_F1)
            if n==12:
                e('s_lshl_b32 s56, s%d, 17',sW); e('s_lshl_b32 s57, s%d, 7',sHG); e('s_add_u32 s56, s56, s57'); e('v_add_u32 v11, s56, v11'); e('s_lshl_b32 s57, s%d, 14',sW)
            if n==14:
                e('s_lshl_b32 s58, s%d, 2',sQ)
        self.pipe(32,3,qreads,lambda j:self.mfma(R(AQ,16),R(QB[j&3]),R(4*j,4,'a'),'0' if j==0 else None),qbar,qfill)
        self.stamp('qdone')
        PQ=48
        self.phi(AQ,16,PQ,160)
        KL=128
        e('s_mov_b32 s%d, 0',sSPIN); e('v_mov_b32 v28, 0x%x',f2u(16.0))
        Lp=k.newlabel('kvp'); k.label(Lp)
        for r in range(2):
            for g in range(3): self.wsld(R(KL+12*r+4*g),vL16,52+r,off=1024*g)
        e('s_add_u32 s%d, s%d, 1',sSPIN,sSPIN); e('s_cmp_gt_u32 s%d, %d',sSPIN,SPIN); e('s_cbranch_scc1 L_end')
        e('s_waitcnt vmcnt(0)')
        for i in range(0,6,2): e('v_min_f32 v%d, v%d, v%d',KL+4*i+3,KL+4*i+3,KL+4*i+7)
        e('v_min3_f32 v%d, v%d, v%d, v%d',KL+3,KL+3,KL+11,KL+19)
        e('v_cmp_neq_f32 vcc, v%d, v28',KL+3)
        e('s_cbranch_vccnz %s',Lp)
        self.stamp('kvok')
        def wo(i):
            e('s_add_u32 s59, s58, %d',i); e('s_and_b32 s59, s59, 15'); e('s_lshl_b32 s65, s59, 10'); e('s_add_u32 m0, s65, s57'); e('s_lshl_b32 s59, s59, 13')
            self.two=self.dma(11,SWO,59)
        self.wo=wo
        for g in range(3):
            e('v_pk_add_f32 %s, %s, %s',R(KL+4*g,2),R(KL+4*g,2),R(KL+12+4*g,2)); e('v_add_f32 v%d, v%d, v%d',KL+4*g+2,KL+4*g+2,KL+12+4*g+2)
        ZB=160
        sel=[KL+4*(j//3)+j%3 for j in range(8)]
        AA,AB,WB=56,60,36
        for j in range(4): e('v_cvt_pk_bf16_f32 v%d, v%d, v%d',AA+j,sel[2*j],sel[2*j+1])
        for j in range(8): e('v_mov_b32_dpp v%d, v%d row_newbcast:%d row_mask:0xf bank_mask:0xf',ZB+j,KL+10,j)
        for j in range(4): e('v_cvt_pk_bf16_f32 v%d, v%d, v%d',AB+j,ZB+2*j,ZB+2*j+1)
        e('s_nop 0')
        for j in range(4): e('v_permlane16_swap_b32 v%d, v%d',AA+j,AB+j)
        e('s_nop 0')
        self.mfma(R(AK,16),R(AA),R(PQ),'0'); self.mfma(R(AV,16),R(AB),R(PQ+4),'0')
        for j in range(8): e('v_mov_b32_dpp v%d, v%d row_newbcast:%d row_mask:0xf bank_mask:0xf',ZB+j,KL+10,8+j)
        for j in range(4): e('v_cvt_pk_bf16_f32 v%d, v%d, v%d',WB+j,ZB+2*j,ZB+2*j+1)
        e('v_add_f32 v28, 0x%x, v%d',f2u(1e-6),AK+8); e('v_add_f32 v30, 0x%x, v%d',f2u(1e-6),AV+8); e('v_rcp_f32 v28, v28'); e('v_rcp_f32 v30, v30')
        for h,A in enumerate((AK,AV)):
            for j in range(0,8,2): e('v_pk_mul_f32 %s, %s, %s op_sel_hi:[1,0]',R(A+j,2),R(A+j,2),R(28+2*h,2))
            for j in range(4): e('v_cvt_pk_bf16_f32 v%d, v%d, v%d',PQ+4*h+j,A+2*j,A+2*j+1)
            self.wsst(R(PQ+4*h),vL16,62,off=1024*h)
            self.mfma(R(160+16*h,16),R(WB),R(PQ+4*h),'0')
        self.stamp('ost')
        wo(0); wo(1)
        e('v_add_f32 v28, v160, v184'); e('v_cvt_pk_bf16_f32 v28, v28, v28')
        e('s_mov_b64 exec, 0xffffffff'); tst=self.wsst('v28',47,63,w=0); e('s_mov_b64 exec, -1')
        for i in range(2,self.opt.get('nwo',6)): wo(i)
        self.stamp('woiss')
        k.waitvm(tst); self.stamp('oack'); e('s_barrier')
        e('s_cmp_eq_u32 s%d, 0',sW); e('s_cselect_b32 s64, s64, 0x%x',OOB)
        self.flag2(64)
        self.stamp('oflag')
    def poll_o(self):
        k=self.k; e=k.e
        e('v_and_b32 v17, 7, v%d',vL); e('v_lshlrev_b32 v17, 3, v17'); e('s_lshl_b32 s52, s%d, 6',sTB); e('s_add_u32 s52, s52, %d',WS_F1)
        self.poll(17,52,14)
    def epoch(self):
        k=self.k; e=k.e
        e('s_cmp_eq_u32 s2, 0'); e('s_cselect_b32 s52, %d, 0x%x',WS_EPOCH,OOB)
        e('s_mov_b64 exec, 1'); self.wsst(R(vN,2),vZ,52,w=2,flags=''); e('s_mov_b64 exec, -1')
    def wgu(self,i,half):
        k=self.k; e=k.e; slot=[131072,0,32768,65536,98304,131072][i]
        def f0():
            e('s_add_u32 s66, s%d, %d',self.sWG,i*32768+half*4096); self.m0(self.sW13,slot+half*4096)
        out=[]
        for q in range(4):
            def f(q=q):
                if q==0: f0(); e('s_nop 0') if False else None
                self.tg[i]=self.dma(vL16,SWS,66,'sc1',off=1024*q)
            out.append(f)
        return out
    def p2(self):
        k=self.k; e=k.e; o=self.opt
        for i in range(o.get('nwo',6),16): self.wo(i)
        self.sWG,self.sW13,sO,sT=84,85,86,87
        e('s_lshl_b32 s66, s%d, 1',sHG); e('s_and_b32 s67, s%d, 1',sQ); e('s_add_u32 s88, s66, s67')
        e('s_mul_i32 s84, s88, %d',6*32768); e('s_lshl_b32 s85, s%d, 13',sW); e('s_add_u32 s84, s84, s85'); e('s_add_u32 s84, s84, %d',WS_WGU)
        e('s_lshl_b32 s86, s%d, 1',sTB); e('s_add_u32 s87, s86, s%d',sTT)
        e('s_mul_i32 s86, s87, %d',33*1024); e('s_lshl_b32 s66, s%d, 12',sHP); e('s_add_u32 s86, s86, s66'); e('s_add_u32 s86, s86, %d',WS_O)
        e('s_lshl_b32 s89, s%d, 15',sTT); e('s_add_u32 s90, s89, s66')
        e('s_add_u32 s89, s89, %d',L_O); e('v_add_u32 v10, s89, v%d',vL16)
        e('v_bfe_u32 v14, v%d, 2, 2',vL); e('v_lshlrev_b32 v14, 6, v14'); e('v_and_b32 v15, 3, v%d',vL); e('v_lshl_add_u32 v14, v15, 3, v14')
        e('v_bfe_u32 v15, v%d, 4, 1',vL); e('v_lshl_add_u32 v14, v15, 5, v14'); e('v_lshrrev_b32 v15, 5, v%d',vL); e('v_lshl_add_u32 v14, v15, 9, v14'); e('v_add_u32 v12, s89, v14')
        self.tg={}
        self.poll_o()
        self.stamp('o_ok')
        to={}
        for c in range(4):
            e('s_add_u32 s52, s86, %d',c*8192); self.m0(90,L_O+c*8192)
            if c==0: e('s_nop 0')
            for q in range(4): to[c]=self.dma(vL16,SWS,52,'sc1',off=1024*q)
        self.epoch()
        pend=self.wgu(0,0)+self.wgu(0,1)
        ACC=192; PB=[24,32,128,136]
        def reads(j):
            b=PB[j&3]
            e('ds_read_b128 %s, v10 offset:%d',R(b+4),j*1024)
            for t in range(2): last=e('ds_read_b64_tr_b16 %s, v13 offset:%d',R(b+2*t,2),L_WO+j*2048+t*1024)
            return last
        st={}
        def bar(j):
            if j%8==0:
                k.waitvm(to[j>>3]); e('s_barrier')
                if j==0: self.stamp('o0')
                if j==16:
                    e('s_lshl_b32 s66, s%d, 12',sHP); e('s_sub_u32 s52, s86, s66'); e('s_add_u32 s52, s52, 32768'); e('s_mov_b32 m0, s89'); e('s_nop 0')
                    st['ext']=self.dma(vL16,SWS,52,'sc1')
        def fill(j):
            if pend and j>=14 and j%2==0: pend.pop(0)()
            if j==1:
                for i in range(4): e('v_mov_b32 v%d, v22',144+i)
            if j==3: e('s_lshl_b32 s60, s87, 5'); e('s_lshl_b32 s61, s%d, 1',sHG); e('s_add_u32 s61, s61, s%d',sHP)
            if j==5: e('s_lshl_b32 s62, s61, 1'); e('s_add_u32 s60, s60, s62'); e('s_lshl_b32 s60, s60, 10'); e('s_add_u32 s60, s60, %d',WS_H)
            if j==7: e('s_lshl_b32 s62, s87, 4'); e('s_add_u32 s62, s62, s61'); e('s_lshl_b32 s63, s62, 7'); e('s_add_u32 s63, s63, %d',WS_STAT)
            if j==9: e('s_lshl_b32 s62, s62, 3'); e('s_add_u32 s62, s62, %d',WS_F2); e('v_lshlrev_b32 v47, 2, v%d',vL)
            if 11<=j<27:
                r=j-11; x=240+r//2
                if r&1: e('v_and_b32 v%d, s%d, v%d',160+r,sMASK,x)
                else: e('v_lshlrev_b32 v%d, 16, v%d',160+r,x)
        self.pipe(32,3,reads,lambda j:self.mfma(R(ACC,16),R(PB[j&3]),R(PB[j&3]+4),'0' if j==0 else None),bar,fill)
        self.stamp('p2mm')
        k.waitvm(st['ext']); e('s_barrier')
        e('ds_read_b64_tr_b16 v[24:25], v12'); t=e('ds_read_b64_tr_b16 v[26:27], v12 offset:256')
        for f in self.wgu(1,0): f()
        k.waitlg(t)
        self.mfma(R(208,16),R(144),R(24),'0')
        for j in range(0,16,2): e('v_pk_add_f32 %s, %s, %s',R(ACC+j,2),R(ACC+j,2),R(160+j,2))
        for j in range(8): e('v_cvt_pk_bf16_f32 v%d, v%d, v%d',240+j,ACC+2*j,ACC+2*j+1)
        e('v_add_f32 v28, v248, v208')
        for j in range(0,16,2): e('v_pk_add_f32 %s, %s, v[28:29] op_sel_hi:[1,0] neg_lo:[0,1] neg_hi:[0,1]',R(ACC+j,2),R(ACC+j,2))
        for j in range(8): e('v_cvt_pk_bf16_f32 v%d, v%d, v%d',128+j,ACC+2*j,ACC+2*j+1)
        self.wsst(R(128),vL16,60); self.wsst(R(132),vL16,60,off=1024)
        for j in range(8):
            d=24+(j&1)
            e('v_dot2_f32_bf16 v%d, v%d, v%d, %s',d,128+j,128+j,'0' if j<2 else 'v%d'%d)
        e('v_add_f32 v24, v24, v25'); e('v_mov_b32 v25, v24'); e('v_permlane32_swap_b32 v24, v25'); e('v_add_f32 v24, v24, v25')
        e('s_mov_b64 exec, 0xffffffff'); tst=self.wsst('v24',47,63,w=1); e('s_mov_b64 exec, -1')
        self.stamp('hst')
        for f in self.wgu(1,1)+(self.wgu(2,0) if o.get('g2',1) else []): f()
        k.waitvm(tst)
        self.flag2(62)
        self.stamp('hflag')
    def p4_consts(self):
        k=self.k; e=k.e
        e('s_mul_i32 s92, s%d, 6',sW)
        e('s_lshl_b32 s93, s%d, 2',sW); e('s_cmp_eq_u32 s%d, 3',sW); e('s_cselect_b32 s66, 1, 0'); e('s_sub_u32 s93, s93, s66'); e('s_add_u32 s93, s93, 72')
        e('s_cmp_ge_u32 s%d, 2',sW); e('s_cselect_b32 s94, 2, 3'); e('s_add_u32 s94, s94, s93')
        e('s_mul_i32 s95, s%d, %d',sHG,172*1024); e('s_add_u32 s95, s95, %d',WS_WD)
        e('s_mul_i32 s96, s%d, %d',sTB,172*1024); e('s_add_u32 s96, s96, %d',WS_A)
        for r in (92,93,94): e('s_lshl_b32 s%d, s%d, 10',r,r)
    def fragloads(self,base,regs):
        k=self.k; e=k.e; out=[]; tok={}
        for j0,n,sr,add in [(0,4,92,0),(4,2,92,4),(6,4,92,24),(10,2,92,28),(12,4,92,48),(16,2,92,52),(18,3,93,0),(21,1,94,0)]:
            for c in range(2):
                for q in range(n):
                    def f(j=j0+q,q=q,c=c,sr=sr,add=add):
                        if q==0:
                            e('s_add_u32 s67, s%d, s%d',base,sr)
                            if add or c: e('s_add_u32 s67, s67, %d',(add+86*c)*1024)
                        tok[(j,c)]=self.wsld(regs(j,c),vL16,67,off=1024*q)
                    out.append(f)
        return out,tok
    @staticmethod
    def wreg(j,c):
        n=2*j+c; return R(128+4*n,4,'a') if n<32 else R(128+4*(n-32))
    @staticmethod
    def areg(j,c):
        n=2*j+c; return R(4*n,4,'a') if n<32 else R(64+4*(n-32))
    def gelu(self,A,dst):
        e=self.k.e; out=[]; T=32
        C1,C3,IR=20,21,19
        def op(fmt,*a): out.append(lambda:e(fmt,*a))
        for h in range(2):
            js=range(4*h,4*h+4)
            for j in js: op('v_mul_f32 v%d, v%d, v%d',T+j,A+j,A+j)
            for j in js: op('v_fma_f32 v%d, v%d, v%d, v%d',T+j,T+j,C3,C1)
            for j in js: op('v_mul_f32 v%d, v%d, v%d',T+j,T+j,A+j)
            for j in js: op('v_exp_f32 v%d, v%d',T+j,T+j); op('v_mul_f32 v%d, v%d, v%d',A+j,A+j,A+8+j)
            for j in js: op('v_fma_f32 v%d, v%d, v%d, v%d',T+j,T+j,IR,IR)
            for j in js: op('v_rcp_f32 v%d, v%d',T+j,T+j)
            for j in js: op('v_mul_f32 v%d, v%d, v%d',A+j,A+j,T+j)
            for j in (4*h,4*h+2): op('v_cvt_pk_bf16_f32 v%d, v%d, v%d',dst+j//2,A+j,A+j+1)
        return out
    def p3(self):
        k=self.k; e=k.e; o=self.opt
        self.p4_consts()
        e('s_lshr_b32 s66, s%d, 1',sQ); e('s_lshl_b32 s66, s66, 2'); e('s_lshl_b32 s67, s%d, 3',sX); e('s_add_u32 s66, s66, s67'); e('s_add_u32 s87, s66, s%d',sW)
        e('s_lshl_b32 s60, s87, 15'); e('s_add_u32 s60, s60, %d',WS_H)
        e('s_lshl_b32 s61, s87, 11'); e('s_add_u32 s61, s61, %d',WS_STAT)
        e('s_lshl_b32 s62, s87, 7'); e('s_add_u32 s62, s62, %d',WS_F2)
        e('s_mul_i32 s66, s88, 6'); e('s_mul_i32 s63, s87, 86'); e('s_add_u32 s63, s63, s66'); e('s_lshl_b32 s63, s63, 10'); e('s_add_u32 s63, s63, %d',WS_A); e('s_add_u32 s65, s63, 4096')
        e('s_mul_i32 s64, s87, 96'); e('s_add_u32 s64, s64, s66'); e('s_lshl_b32 s64, s64, 3'); e('s_add_u32 s64, s64, %d',WS_F3)
        e('v_and_b32 v17, 15, v%d',vL); e('v_lshlrev_b32 v17, 3, v17'); e('v_lshlrev_b32 v16, 2, v%d',vL)
        e('v_add_u32 v10, 65536, v%d',vL16); e('v_add_u32 v11, 131072, v%d',vL16)
        wl,self.twd=self.fragloads(95,self.wreg)
        Lskip=k.newlabel('p3skip'); Lshort=k.newlabel('p3short'); Ldone=k.newlabel('p3done')
        e('s_cmp_ge_u32 s88, 15'); e('s_cbranch_scc1 %s',Lskip)
        pend=[]
        if not o.get('g2',1): pend+=self.wgu(2,0)
        for f in self.wgu(2,1): f()
        tF01=self.tg[1]
        self.poll(17,62,14)
        self.stamp('h_ok')
        th={}
        hl=[]
        for s in range(32):
            def f(s=s):
                if s%4==0: e('s_add_u32 s52, s60, %d',s*1024)
                th[s]=self.wsld(R(4*s,4,'a'),vL16,52,off=1024*(s%4))
            hl.append(f)
        sl=[(lambda m=m: th.__setitem__(('s',m),self.wsld('v%d'%(40+m),16,61,off=256*m,w=1))) for m in range(8)]
        NH=o.get('nh0',10)
        for f in hl[:NH]: f()
        pend=hl[NH:]+sl+pend+self.wgu(3,0)+self.wgu(3,1)+self.wgu(4,0)+self.wgu(4,1)
        e('s_barrier')
        ACC=[192,208,224]; WB=[24,28,48,52]
        seq=[(f,s) for s in range(32) for f in range(2)]+[(f,s) for f in range(2,6) for s in range(32)]
        slotoff=[131072,0,32768,65536,98304,131072]
        def reads(j):
            f,s=seq[j]; off=slotoff[f]+s*1024
            v,off=(vL16,off) if off<65536 else ((10,off-65536) if off<131072 else (11,off-131072))
            return e('ds_read_b128 %s, v%d offset:%d',R(WB[j&3]),v,off)
        epi=[]; st={}; tst={}
        def stats():
            out=[]
            def op(fmt,*a): out.append(lambda:e(fmt,*a))
            out.append(lambda:k.waitvm(th[('s',7)]))
            for a,b in ((40,41),(42,43),(44,45),(46,47)): pass
            op('v_add_f32 v40, v40, v41'); op('v_add_f32 v42, v42, v43'); op('v_add_f32 v44, v44, v45'); op('v_add_f32 v46, v46, v47')
            op('v_add_f32 v40, v40, v42'); op('v_add_f32 v44, v44, v46'); op('v_add_f32 v40, v40, v44'); op('v_mov_b32 v41, v40')
            op('s_nop 0'); op('v_permlane32_swap_b32 v40, v41'); op('v_add_f32 v40, v40, v41'); op('v_mul_f32 v40, 0x%x, v40',f2u(1/512.))
            op('v_cvt_pk_bf16_f32 v41, v40, v40'); op('v_lshlrev_b32 v40, 16, v41'); op('v_add_f32 v40, 0x%x, v40',f2u(1e-5))
            op('v_cvt_pk_bf16_f32 v41, v40, v40'); op('v_lshlrev_b32 v40, 16, v41'); op('v_sqrt_f32 v40, v40'); op('s_nop 0')
            op('v_cvt_pk_bf16_f32 v41, v40, v40'); op('v_lshlrev_b32 v40, 16, v41'); op('v_rcp_f32 v41, v40'); op('v_mul_f32 v19, v40, v40')
            K0=-2*0.7978845608028654*1.4426950408889634
            op('v_mul_f32 v20, 0x%x, v41',f2u(K0)); op('v_mul_f32 v41, v41, v41'); op('v_mul_f32 v41, 0x%x, v41',f2u(0.044715)); op('v_mul_f32 v21, v20, v41')
            return out
        def unit_epi(u):
            D=56+4*(u&1)
            def store(): tst[u]=self.wsst(R(D),vL16,63 if u<4 else 65,off=1024*(u&3))
            return self.gelu(ACC[u%3],D)+[store]
        def flag(u):
            def f():
                k.waitvm(tst[u]); self.flag2(64,off=8*u)
            return f
        def bar(j):
            f,s=seq[j]
            if f>=2 and s==0:
                if f==2:
                    pass
                k.waitvm(self.tg[f]); e('s_barrier')
                if f==3: pend[0:0]=self.wgu(5,0)+self.wgu(5,1)
        def mf(j):
            f,s=seq[j]
            if f<2 and j%2==0: k.waitvm(th[s])
            self.mfma(R(ACC[f%3],16),R(WB[j&3]),R(4*s,4,'a'),'0' if s==0 else None)
        sst=stats()
        def fill(j):
            if j<64:
                if pend: pend.pop(0)()
                if j>=44:
                    for _ in range(2):
                        if sst: sst.pop(0)()
            else:
                jj=j-64
                if jj==0:
                    assert not sst
                    pend.extend(wl)
                    epi.extend(unit_epi(0)+unit_epi(1)+[flag(0)])
                if jj==33: epi.extend(unit_epi(2)+[flag(1)])
                if jj==65: epi.extend(unit_epi(3)+[flag(2)])
                if jj==97: epi.extend(unit_epi(4)+[flag(3)])
                if jj%2==1 and pend: pend.pop(0)()
                n=3 if (jj<96) else 3
                if jj in (0,32,64,96): n=0
                for _ in range(n):
                    if epi: epi.pop(0)()
        tok={}
        L=3; n=len(seq)
        for j in range(L): tok[j]=reads(j)
        for j in range(n):
            k.waitlg(tok[j]); mf(j)
            if j==63-L+1-1+0 and False: pass
            if j+L<n:
                if j+L==64:
                    e('s_cmp_eq_u32 s88, 14'); e('s_cbranch_scc1 %s',Lshort)
                    snap=(list(k.vm),k.vmdone,list(k.lg),k.lgdone,dict(k.pend),list(k.hist),list(pend),list(sst),dict(tok))
                bar(j+L); tok[j+L]=reads(j+L)
            fill(j)
            if j==63: self.stamp('pair')
        self.stamp('p3mm')
        while pend: pend.pop(0)()
        while epi: epi.pop(0)()
        for f in unit_epi(5): f()
        flag(4)(); self.stamp('a5st'); flag(5)()
        self.stamp('aflag')
        e('s_branch %s',Ldone)
        main=(list(k.vm),k.vmdone,list(k.lg),k.lgdone,dict(k.pend))
        k.label(Lshort)
        k.vm,k.vmdone,k.lg,k.lgdone,k.pend,k.hist,_,sst2,tok=snap
        for f in sst2: pass
        for j in range(64-L,64):
            if j>64-L: k.waitlg(tok[j]); mf(j)
        for f in sst2: f()
        for u in range(2):
            for f in unit_epi(u): f()
        e('s_waitcnt vmcnt(0)'); self.flag2(64,off=0); self.flag2(64,off=8)
        k.label(Lskip)
        wl2,_=self.fragloads(95,self.wreg)
        k.check=False
        for f in wl2: f()
        e('s_waitcnt vmcnt(0) lgkmcnt(0)')
        k.check=True
        k.label(Ldone)
        k.vm,k.vmdone,k.lg,k.lgdone,k.pend=main
    def p4(self):
        k=self.k; e=k.e; o=self.opt
        e('v_min_u32 v14, 43, v%d',vL); e('v_cmp_le_u32 vcc, 22, v14'); e('v_subrev_u32 v15, 22, v14'); e('v_cndmask_b32 v14, v14, v15, vcc')
        e('v_cndmask_b32 v16, 0, 1, vcc')
        e('v_mul_u32_u24 v15, 43, v14'); e('v_lshrrev_b32 v15, 8, v15')
        e('v_mul_u32_u24 v17, 18, v15'); e('v_add_u32 v17, v17, v14'); e('s_lshr_b32 s52, s92, 10'); e('v_add_u32 v17, s52, v17')
        e('s_lshr_b32 s52, s93, 10'); e('s_lshr_b32 s53, s94, 10'); e('v_subrev_u32 v15, 18, v14'); e('v_add_u32 v15, s52, v15'); e('v_min_u32 v15, s53, v15')
        e('v_cmp_le_u32 vcc, 18, v14'); e('v_cndmask_b32 v17, v17, v15, vcc')
        e('v_mul_u32_u24 v16, 96, v16'); e('v_add_u32 v17, v17, v16'); e('v_lshlrev_b32 v17, 3, v17')
        e('s_mul_i32 s52, s%d, %d',sTB,2*96*8); e('s_add_u32 s52, s52, %d',WS_F3)
        ACC=[192,208,224,176]
        for r in range(16):
            x=240+r//2
            if r&1: e('v_and_b32 v%d, s%d, v%d',24+r,sMASK,x)
            else: e('v_lshlrev_b32 v%d, 16, v%d',24+r,x)
        for t in range(4):
            e('s_cmp_eq_u32 s%d, %d',sW,t); e('s_cselect_b32 s53, -1, 0')
            for r in range(16): e('v_and_b32 v%d, s53, v%d',ACC[t]+r,24+r)
        e('v_and_b32 v14, 31, v%d',vL); e('v_mul_u32_u24 v14, 272, v14'); e('v_lshrrev_b32 v15, 5, v%d',vL); e('v_lshl_add_u32 v18, v15, 4, v14'); e('s_mul_i32 s53, s%d, 17408',sW); e('v_add_u32 v18, s53, v18')
        e('v_lshrrev_b32 v14, 3, v%d',vL); e('v_and_b32 v15, 7, v%d',vL); e('v_mul_u32_u24 v19, 272, v14'); e('v_lshl_add_u32 v19, v15, 5, v19'); e('s_mul_i32 s53, s%d, %d',sW,16*272); e('v_add_u32 v19, s53, v19')
        e('v_lshlrev_b32 v20, 10, v14'); e('v_lshl_add_u32 v20, v15, 4, v20')
        e('s_lshl_b32 s60, s%d, 2',sTB); e('s_add_u32 s60, s60, s%d',sW); e('s_lshl_b32 s60, s60, 14'); e('s_lshl_b32 s53, s%d, 7',sHG); e('s_add_u32 s60, s60, s53'); e('s_add_u32 s61, s60, 8192')
        self.poll(17,52,14)
        self.stamp('a_ok')
        al,ta=self.fragloads(96,self.areg)
        NA=o.get('na0',10)
        for f in al[:NA]: f()
        pend=al[NA:]
        Ls=k.newlabel('p4s')
        for j in range(22):
            if j==21:
                while pend: pend.pop(0)()
                e('s_cmp_ge_u32 s%d, 2',sW); e('s_cbranch_scc1 %s',Ls)
            for tt in range(2):
                while (j,tt) not in ta: pend.pop(0)()
                k.waitvm(ta[(j,tt)])
                for ct in range(2):
                    self.mfma(R(ACC[tt+2*ct],16),self.wreg(j,ct),self.areg(j,tt))
                    if pend and ct==0: pend.pop(0)()
        k.label(Ls)
        self.stamp('p4mm')
        for tt in range(2):
            for ct in range(2):
                for q in range(4): last=e('ds_write_b128 v18, %s offset:%d',R(ACC[tt+2*ct]+4*q),tt*32*272+ct*128+q*32)
        k.waitlg(last); e('s_barrier')
        for r in range(2):
            for p in range(4):
                for h in range(2): last=e('ds_read_b128 %s, v19 offset:%d',R(64+32*r+8*p+4*h),p*17408+r*8*272+h*16)
            self.tl=getattr(self,'tl',{}); self.tl[r]=last
        for r in range(2):
            k.waitlg(self.tl[r]); B=64+32*r
            for j in range(0,8,2):
                e('v_pk_add_f32 %s, %s, %s',R(B+j,2),R(B+j,2),R(B+8+j,2)); e('v_pk_add_f32 %s, %s, %s',R(B+16+j,2),R(B+16+j,2),R(B+24+j,2))
            for j in range(0,8,2): e('v_pk_add_f32 %s, %s, %s',R(B+j,2),R(B+j,2),R(B+16+j,2))
            for j in range(4): e('v_cvt_pk_bf16_f32 v%d, v%d, v%d',B+8+j,B+2*j,B+2*j+1)
            e('buffer_store_dwordx4 %s, v20, s[%d:%d], s%d offen',R(B+8),SO,SO+3,60+r)
def report(g,s):
    print('nops',g.k.nops,'lines',len(s.split('\n')))
    import collections
    c=collections.Counter()
    for n,p,t in g.k.noplog: c[(p.split()[0],t.split()[0])]+=n
    print(c.most_common(20))
if __name__=='__main__':
    stop=sys.argv[1] if len(sys.argv)>1 else None
    if stop=='all': stop=None
    g=G(stamps=True,stop=stop); s=g.build(); open('k_t.s','w').write(s); report(g,s)
    import harness, cdna_launch as CL
    harness.build('k_t.s'); print(CL.address_register_problem('k_t.co', KN))
```

```python
import sys, struct
from kasm import *
NAME='sequential_preLN__linear_attn_block__geglu_ffn__prompt'
KN=NAME+'_kernel'
def f2u(x): return struct.unpack('<I',struct.pack('<f',x))[0]
WS_EPOCH=0x0
WS_ZF   =0x1000
WS_F1   =0x2000
WS_F2   =0x3000
WS_XC   =0x6000
WS_F3   =0x8000
WS_KV   =0x40000
WS_STAT =0x80000
WS_O    =0x100000
WS_H    =0x340000
WS_A    =0x580000
WS_WGU  =0xB00000
WS_WD   =0xE00000
WS_STAMP=0x1000000
WS_SIZE =0x1100000
OOB=0x7F000000
XNP=1040
L_RING=66560
L_P0=L_RING+65536
L_XR=L_P0+12288
L_MEAN=L_P0+24576
L_WO=0
L_O=65536
L_W=[131072-0,0,32768,65536]
LDS=163840
L_W=[LDS-32768+0,0,32768,65536]
SPIN=400000
SX,SW,SWO,SG,SU,SD,SO,SWS=4,8,12,16,20,24,28,32
sW,sX,sLOC,sHG,sQ,sTB,sN0,sN1=36,37,38,39,40,41,42,43
sC0=44; sTT=45; sHP=46; sW11=47
sSPIN=68; sMASK=69
sWK=8*0+84
sXK=92
STAMP0=70
def srd(k,d,lo,nbytes):
    k.e('s_mov_b32 s%d, s%d',d,lo); k.e('s_and_b32 s%d, s%d, 0xffff',d+1,lo+1); k.e('s_mov_b32 s%d, 0x%x',d+2,nbytes); k.e('s_mov_b32 s%d, 0x00020000',d+3)
def R(b,n=4,p='v'): return '%s[%d:%d]'%(p,b,b+n-1)
vL,vL16,vZ,vN=1,2,3,4
vST=255
vFP,vFG=249,250
class G:
    def __init__(self, stamps=False, stop=None, opt=None):
        self.k=K(); self.stamps=stamps; self.stop=stop; self.nst=0; self.names=[]; self.opt=opt or {}; self.pst=[]
    def stamp(self,name):
        if not self.stamps: return
        if self.opt.get('only') and name not in self.opt['only']: return
        k=self.k
        if len(self.pst)==7: self.flush_stamps()
        i=len(self.pst); k.e('s_memrealtime s[%d:%d]',STAMP0+2*i,STAMP0+2*i+1); self.pst.append(self.nst); self.nst+=1; self.names.append(name)
    def flush_stamps(self):
        k=self.k
        if not self.pst: return
        k.e('s_waitcnt lgkmcnt(0)')
        for i,n in enumerate(self.pst): k.e('v_writelane_b32 v%d, s%d, %d',vST,STAMP0+2*i,n)
        self.pst=[]
    def mfma(self,d,a,b,c=None):
        self.k.e('v_mfma_f32_32x32x16_bf16 %s, %s, %s, %s',d,a,b,c if c is not None else d)
    def m0(self,sr,imm):
        if sr is None: self.k.e('s_mov_b32 m0, %d',imm)
        else: self.k.e('s_add_u32 m0, s%d, %d',sr,imm)
    def dma(self,voff,srd_,soff,flags='',off=0):
        return self.k.e('buffer_load_dwordx4 v%d, s[%d:%d], s%d offen %s%s lds',voff,srd_,srd_+3,soff,('offset:%d '%off) if off else '',flags)
    def wsld(self,dst,voff,soff,off=0,w=4,flags='sc1'):
        return self.k.e('buffer_load_dword%s %s, v%d, s[%d:%d], s%d offen %s%s',{1:'',2:'x2',4:'x4'}[w],dst,voff,SWS,SWS+3,soff,('offset:%d '%off) if off else '',flags)
    def wsst(self,src,voff,soff,off=0,w=4,flags='sc1'):
        return self.k.e('buffer_store_%s %s, v%d, s[%d:%d], s%d offen %s%s',{0:'short',1:'dword',2:'dwordx2',4:'dwordx4'}[w],src,voff,SWS,SWS+3,soff,('offset:%d '%off) if off else '',flags)
    def poll(self,vaddr,sbase,vt):
        k=self.k; e=k.e
        e('s_mov_b32 s%d, 0',sSPIN)
        p=k.newlabel('poll'); k.label(p)
        self.wsld(R(vt,2),vaddr,sbase,w=2)
        e('s_add_u32 s%d, s%d, 1',sSPIN,sSPIN); e('s_cmp_gt_u32 s%d, %d',sSPIN,SPIN); e('s_cbranch_scc1 L_end')
        e('s_waitcnt vmcnt(0)')
        e('v_cmp_ne_u64 vcc, %s, %s',R(vt,2),R(vN,2))
        e('s_cbranch_vccnz %s',p)
    def flag(self,soff):
        k=self.k; e=k.e
        a=k.newlabel('fg'); b=k.newlabel('fe')
        e('s_mov_b64 exec, 1')
        e('s_cmp_eq_u32 s%d, 0',sLOC); e('s_cbranch_scc1 %s',a)
        self.wsst(R(vN,2),vZ,soff,w=2,flags='')
        e('s_branch %s',b)
        k.label(a); k.vm.pop()
        t=self.wsst(R(vN,2),vZ,soff,w=2)
        k.label(b)
        e('s_mov_b64 exec, -1')
        return t
    def pipe(self,n,L,reads,mf,bar=None,fill=None,wait_every=1):
        k=self.k; tok={}
        for j in range(min(L,n)):
            if bar: bar(j)
            tok[j]=reads(j)
        for j in range(n):
            if j%wait_every==0: k.waitlg(tok[min(n-1,j+wait_every-1)])
            mf(j)
            if j+L<n:
                if bar: bar(j+L)
                tok[j+L]=reads(j+L)
            if fill: fill(j)
    def flag2(self,soff,off=0):
        self.wsst(R(vN,2),vFP,soff,off=off,w=2,flags='')
        return self.wsst(R(vN,2),vFG,soff,off=off,w=2)
    def bfround(self,v,t):
        e=self.k.e
        e('v_cvt_pk_bf16_f32 v%d, v%d, v%d',t,v,v); e('v_lshlrev_b32 v%d, 16, v%d',v,t)
    def build(self):
        k=self.k; e=k.e
        k.raw('.text\n.globl %s\n.p2align 8\n.type %s,@function\n%s:'%(KN,KN,KN))
        self.stamp('start')
        e('s_load_dwordx4 s[48:51], s[0:1], 0')
        e('s_load_dwordx2 s[64:65], s[0:1], 72')
        e('s_load_dwordx2 s[52:53], s[0:1], 16')
        e('s_load_dwordx4 s[56:59], s[0:1], 32')
        e('s_load_dwordx4 s[60:63], s[0:1], 48')
        e('s_cmp_ge_u32 s2, 256'); e('s_cbranch_scc1 L_end')
        e('v_lshrrev_b32 v6, 6, v0'); e('v_and_b32 v%d, 63, v0',vL); e('v_readfirstlane_b32 s%d, v6',sW)
        e('s_and_b32 s%d, s2, 7',sX); e('s_lshr_b32 s66, s2, 3')
        e('s_and_b32 s%d, s66, 7',sHG); e('s_lshr_b32 s%d, s66, 3',sQ)
        e('s_lshl_b32 s%d, s%d, 2',sTB,sX); e('s_add_u32 s%d, s%d, s%d',sTB,sTB,sQ)
        if self.opt.get('ipf',1):
            k.raw('    s_getpc_b64 s[100:101]\nL_pc:')
            e('s_lshl_b32 s66, s66, 2'); e('s_add_u32 s66, s66, s%d',sW); e('s_min_u32 s66, s66, (L_end-L_pc)/1024-1'); e('s_lshl_b32 s66, s66, 10')
            e('v_lshl_add_u32 v7, v%d, 4, s66',vL)
            e('global_load_dwordx4 v[252:255], v7, s[100:101]') if not self.stamps else e('global_load_dwordx4 v[244:247], v7, s[100:101]')
        self.p1_start()
        self.p1()
        if self.stop!='p1':
            self.p2()
            if self.stop!='p2':
                self.p3()
                if self.stop!='p3': self.p4()
        else:
            self.poll_o(); self.epoch()
        self.stamp('end')
        if self.stamps:
            self.flush_stamps()
            e('s_waitcnt vmcnt(0)')
            e('s_lshl_b32 s48, s2, 2'); e('s_add_u32 s48, s48, s%d',sW); e('s_lshl_b32 s48, s48, 7'); e('s_add_u32 s48, s48, %d',WS_STAMP)
            e('v_lshlrev_b32 v6, 2, v%d',vL); e('s_mov_b64 exec, 0xffffffff')
            self.wsst('v%d'%vST,6,48,w=1,flags='')
            if self.opt.get('dbg') is not None:
                e('s_load_dwordx2 s[52:53], s[0:1], 64'); e('s_waitcnt lgkmcnt(0)')
                srd(k,56,52,256)
                e('v_readlane_b32 s60, v%d, 0',vST); e('s_nop 1'); e('v_subrev_u32 v7, s60, v%d',vST)
                e('s_cmp_eq_u32 s2, %d',self.opt['dbg']); e('s_cselect_b32 s61, 0, 0x%x',OOB); e('s_cmp_eq_u32 s%d, 0',sW); e('s_cselect_b32 s61, s61, 0x%x',OOB)
                e('buffer_store_dword v7, v6, s[56:59], s61 offen')
        k.label('L_end'); e('s_endpgm')
        hdr='; @launch grid=(256,1,1) block=(256,1,1) lds=%d\n.amdgcn_target "amdgcn-amd-amdhsa--gfx950"\n'%LDS
        desc='''.section .rodata,"a"
.p2align 6
.amdhsa_kernel %s
  .amdhsa_next_free_vgpr 512
  .amdhsa_next_free_sgpr 102
  .amdhsa_accum_offset 256
  .amdhsa_group_segment_fixed_size 0
  .amdhsa_kernarg_size 80
  .amdhsa_user_sgpr_count 2
  .amdhsa_user_sgpr_kernarg_segment_ptr 1
  .amdhsa_system_sgpr_workgroup_id_x 1
.end_amdhsa_kernel
'''%KN
        return hdr+k.text()+desc
    def p1_start(self):
        k=self.k; e=k.e
        self.tx={}; self.tw={}
        e('v_lshrrev_b32 v24, 4, v%d',vL); e('v_and_b32 v25, 15, v%d',vL); e('v_lshlrev_b32 v25, 4, v25')
        e('v_lshl_add_u32 v6, v24, 10, v25')
        e('s_lshl_b32 s54, s%d, 2',sTB); e('s_add_u32 s54, s54, s%d',sW); e('s_lshl_b32 s54, s54, 14')
        for g in range(4):
            e('s_add_u32 s66, s%d, %d',sHG,g); e('s_and_b32 s%d, s66, 3',sXK+4+g)
        e('s_lshl_b32 s66, s%d, 12',sXK+4); e('s_add_u32 s55, s54, s66')
        e('v_and_b32 v26, 1, v24'); e('v_lshlrev_b32 v26, 2, v26'); e('v_and_b32 v27, 7, v%d',vL); e('v_xor_b32 v27, v27, v26'); e('v_lshlrev_b32 v27, 4, v27')
        e('v_lshrrev_b32 v26, 3, v%d',vL)
        e('v_mul_u32_u24 v16, 3072, v26'); e('v_add_u32 v16, v16, v27')
        e('s_mul_i32 s66, s%d, %d',sW,16*3072); e('s_lshl_b32 s67, s%d, 7',sHG); e('s_add_u32 s66, s66, s67')
        e('v_add_u32 v16, s66, v16')
        e('s_lshl_b32 s%d, s%d, 1',sC0,sQ); e('s_and_b32 s66, s%d, 1',sX); e('s_add_u32 s%d, s%d, s66',sC0,sC0)
        e('s_mul_i32 s%d, s%d, %d',sWK,sC0,64*3072)
        e('s_lshl_b32 s%d, s%d, 11',sW11,sW)
        e('v_add_u32 v8, 1024, v16'); e('v_add_u32 v9, %d, v16',1024+8*3072); e('v_add_u32 v14, 2048, v16'); e('v_add_u32 v15, %d, v16',2048+8*3072)
        e('s_waitcnt lgkmcnt(0)')
        e('s_load_dwordx2 s[%d:%d], s[64:65], %d',sN0,sN1,WS_EPOCH)
        srd(k,SX,48,2048*1024)
        for i in range(4): self.tx[0]=e('buffer_load_dwordx4 %s, v6, s[%d:%d], s55 offen offset:%d',R(64+4*i),SX,SX+3,256*i)
        srd(k,SW,50,512*3072)
        for f in self.wdma(0): f[0](); e('s_nop 0'); f[1]()
        for g in (1,2,3):
            e('s_lshl_b32 s66, s%d, 12',sXK+4+g); e('s_add_u32 s55, s54, s66')
            for i in range(4): self.tx[g]=e('buffer_load_dwordx4 %s, v6, s[%d:%d], s55 offen offset:%d',R(64+16*g+4*i),SX,SX+3,256*i)
            if g==1: self.consts()
        self.stamp('issued')
    def consts(self):
        k=self.k; e=k.e
        srd(k,SWS,64,WS_SIZE); srd(k,SWO,52,512*1024); srd(k,SG,56,512*2752); srd(k,SU,58,512*2752); srd(k,SD,60,1376*1024); srd(k,SO,62,2048*1024)
        e('v_lshlrev_b32 v%d, 4, v%d',vL16,vL); e('v_mov_b32 v%d, 0',vZ)
        e('s_and_b32 s%d, s%d, 1',sTT,sW); e('s_lshr_b32 s%d, s%d, 1',sHP,sW)
        e('s_mov_b32 s%d, 0xffff0000',sMASK)
        e('v_add_u32 v17, %d, v16',8*3072)
        e('v_lshl_add_u32 v11, v26, 10, v27')
        e('v_mul_u32_u24 v12, 2752, v26'); e('v_add_u32 v12, v12, v27')
        e('s_mul_i32 s66, s%d, %d',sTB,16*3072); e('s_mul_i32 s67, s%d, 6144',sHG); e('s_add_u32 s66, s66, s67'); e('s_mul_i32 s67, s%d, 1536',sW); e('s_add_u32 s66, s66, s67'); e('s_add_u32 s66, s66, %d',WS_KV)
        e('s_cmp_lt_u32 s%d, 2',sTB); e('s_cselect_b32 s66, s66, 0x%x',OOB)
        for i in range(28,32): e('v_mov_b32 v%d, 0',i)
        e('v_lshlrev_b32 v23, 3, v%d',vL)
        self.wsst(R(28),vL16,66); self.tzero=self.wsst(R(28,2),23,66,off=1024,w=2)
        e('v_mul_u32_u24 v7, %d, v24',XNP); e('v_add_u32 v7, v7, v25')
        e('s_mul_i32 s67, s%d, %d',sW,16*XNP); e('v_add_u32 v7, s67, v7')
        for g in (1,2,3,0):
            e('s_mul_i32 s66, s%d, %d',sXK+4+g,4*XNP); e('v_add_u32 v%d, s66, v7',7 if g==0 else 39+g)
        e('s_lshl_b32 s66, s%d, 6',sW); e('s_add_u32 s66, s66, %d',L_MEAN); e('v_lshl_add_u32 v43, v24, 2, s66')
        for g in range(4): e('s_lshl_b32 s%d, s%d, 4',56+g,sXK+4+g)
        for c in range(1,8):
            e('s_add_u32 s66, s%d, %d',sC0,c); e('s_and_b32 s66, s66, 7'); e('s_mul_i32 s%d, s66, %d',sWK+c,64*3072)
        e('v_bfe_u32 v24, v%d, 2, 2',vL); e('v_bfe_u32 v25, v%d, 1, 1',vL); e('v_bfe_u32 v26, v%d, 4, 1',vL)
        e('v_lshl_add_u32 v25, v26, 1, v25')
        e('v_bfe_u32 v26, v%d, 3, 1',vL); e('v_lshlrev_b32 v26, 2, v26')
        e('v_lshlrev_b32 v24, 7, v24'); e('v_and_b32 v27, 1, v%d',vL); e('v_lshl_add_u32 v24, v27, 3, v24')
        e('v_lshrrev_b32 v27, 5, v%d',vL)
        e('s_lshl_b32 s66, s%d, 2',sHP)
        e('v_add_u32 v28, s66, v25'); e('v_xor_b32 v28, v28, v26'); e('v_lshl_add_u32 v28, v28, 4, v24')
        e('v_lshl_add_u32 v18, v27, 10, v28'); e('v_add_u32 v18, %d, v18',L_RING)
        e('v_lshl_add_u32 v13, v27, 9, v28')
        e('v_bfe_u32 v29, v%d, 1, 1',vL); e('v_xor_b32 v29, v29, v26'); e('v_lshl_add_u32 v29, v29, 4, v24'); e('v_lshl_add_u32 v29, v27, 9, v29')
        e('v_bfe_u32 v20, v%d, 4, 1',vL); e('v_lshl_add_u32 v20, v20, 11, v29')
        e('v_xor_b32 v21, v25, v26'); e('v_lshl_add_u32 v21, v21, 4, v24'); e('v_lshl_add_u32 v21, v27, 9, v21')
        e('s_mul_i32 s66, s%d, 6144',sW); e('s_add_u32 s66, s66, %d',L_P0)
        e('v_add_u32 v20, s66, v20'); e('v_add_u32 v21, s66, v21')
        e('v_and_b32 v28, 31, v%d',vL); e('s_lshl_b32 s66, s%d, 5',sTT); e('v_add_u32 v28, s66, v28')
        e('v_mul_u32_u24 v10, %d, v28',XNP); e('v_lshl_add_u32 v10, v27, 4, v10')
        e('v_bfe_u32 v29, v28, 1, 3'); e('s_lshl_b32 s66, s%d, 2',sHP); e('v_xor_b32 v29, s66, v29'); e('v_lshlrev_b32 v29, 4, v29')
        e('v_lshl_add_u32 v19, v28, 7, v29'); e('v_lshl_add_u32 v19, v27, 3, v19'); e('v_add_u32 v19, %d, v19',L_XR)
        e('v_lshl_add_u32 v44, v28, 2, 0'); e('v_add_u32 v44, %d, v44',L_MEAN)
        e('v_mov_b32 v22, 0x3f803f80')
        e('s_waitcnt lgkmcnt(0)')
        e('s_mul_i32 s%d, s%d, 1664525',sN0,sN0); e('s_add_u32 s%d, s%d, 1013904223',sN0,sN0)
        e('s_mul_i32 s%d, s%d, 22695477',sN1,sN1); e('s_add_u32 s%d, s%d, 0x3c6ef35f',sN1,sN1)
        e('v_mov_b32 v%d, s%d',vN,sN0); e('v_mov_b32 v%d, s%d',vN+1,sN1)
        e('s_getreg_b32 s%d, hwreg(HW_REG_XCC_ID, 0, 4)',sLOC)
        e('v_mov_b32 v28, s%d',sN0); e('v_mov_b32 v29, s%d',sN1); e('v_mov_b32 v30, s%d',sLOC)
        e('s_lshr_b32 s66, s2, 3'); e('s_lshl_b32 s67, s%d, 5',sX); e('s_add_u32 s66, s66, s67'); e('s_lshl_b32 s66, s66, 4'); e('s_add_u32 s66, s66, %d',WS_XC)
        e('s_cmp_eq_u32 s%d, 0',sW); e('s_cselect_b32 s66, s66, 0x%x',OOB)
        e('s_mov_b64 exec, 1'); self.wsst(R(28),vZ,66); e('s_mov_b64 exec, -1')
    def wdma(self,c):
        out=[]; slot=L_RING+(c%4)*16384
        for m in range(2):
            for h in range(2):
                v=[[8,9],[14,15]][m][h] if c<8 else [16,17][h]
                s=sWK+(c if c<8 else 2*(c-8)+m)
                def f0(m=m,h=h): self.m0(sW11,slot+m*8192+h*1024)
                def f1(v=v,s=s): self.tw[c]=self.dma(v,SW,s)
                out.append((f0,f1))
        return out
    def p0_issue(self):
        k=self.k; e=k.e
        e('s_lshl_b32 s60, s%d, 2',sHG); e('s_add_u32 s60, s60, s%d',sW)
        e('s_mul_i32 s61, s60, 96'); e('s_mul_i32 s62, s%d, %d',sTB,16*2752); e('s_add_u32 s61, s61, s62')
        e('s_cmp_lt_u32 s60, 29'); e('s_cselect_b32 s61, s61, 0x%x',OOB); e('s_add_u32 s62, s61, %d',8*2752)
        e('s_mul_i32 s63, s%d, 6144',sW)
        e('s_lshl_b32 s64, s2, 2'); e('s_add_u32 s64, s64, s%d',sW)
        e('s_lshr_b32 s65, s64, 3'); e('s_lshl_b32 s65, s65, 14'); e('s_and_b32 s66, s64, 7'); e('s_lshl_b32 s66, s66, 7'); e('s_add_u32 s65, s65, s66')
        e('s_cmp_lt_u32 s64, 688'); e('s_cselect_b32 s65, s65, 0x%x',OOB)
        e('s_lshl_b32 s52, s%d, 1',sTB); e('s_add_u32 s52, s52, s%d',sTT); e('s_lshl_b32 s53, s%d, 6',sHG); e('s_add_u32 s53, s53, s52'); e('s_lshl_b32 s53, s53, 10')
        e('s_lshr_b32 s67, s52, 5'); e('s_cmp_eq_u32 s67, s%d',sHP); e('s_cselect_b32 s53, s53, 0x%x',OOB)
        self.m0(63,L_P0); e('s_add_u32 s66, s65, 8192'); self.dma(12,SG,61,'nt')
        self.m0(63,L_P0+1024); self.twb=e('buffer_load_dwordx4 v[60:63], v%d, s[%d:%d], s53 offen',vL16,SWO,SWO+3); self.dma(12,SG,62,'nt')
        for (v,sr,so,l) in ((12,SU,61,2048),(12,SU,62,3072),(11,SD,65,4096),(11,SD,66,5120)):
            self.m0(63,L_P0+l); e('s_nop 0'); self.tp0=self.dma(v,sr,so,'nt')
    def p0_finish(self):
        k=self.k; e=k.e
        B=128
        e('v_xor_b32 v24, 32, v20'); e('v_xor_b32 v25, 64, v20'); e('v_xor_b32 v26, 64, v21')
        k.waitvm(self.tp0)
        for f in range(3):
            for t in range(2): e('ds_read_b64_tr_b16 %s, v%d offset:%d',R(B+4*f+2*t,2),[20,24,25][f],t*1024)
        for ct in range(2):
            for t in range(2): last=e('ds_read_b64_tr_b16 %s, v%d offset:%d',R(B+12+4*ct+2*t,2),26 if ct else 21,4096+t*1024)
        e('s_mul_i32 s61, s60, %d',3*32768); e('s_lshl_b32 s62, s%d, 10',sTB); e('s_add_u32 s61, s61, s62'); e('s_add_u32 s61, s61, %d',WS_WGU)
        e('s_cmp_lt_u32 s60, 29'); e('s_cselect_b32 s61, s61, 0x%x',OOB); e('s_add_u32 s62, s61, 32768'); e('s_add_u32 s63, s61, 65536')
        e('s_cmp_lt_u32 s60, 28'); e('s_cselect_b32 s63, s63, 0x%x',OOB)
        e('s_lshr_b32 s65, s64, 3'); e('s_and_b32 s66, s64, 7'); e('s_mul_i32 s66, s66, 172'); e('s_add_u32 s65, s65, s66'); e('s_lshl_b32 s65, s65, 10'); e('s_add_u32 s65, s65, %d',WS_WD)
        e('s_cmp_lt_u32 s64, 688'); e('s_cselect_b32 s65, s65, 0x%x',OOB); e('s_add_u32 s66, s65, %d',86*1024)
        e('v_dot2_f32_bf16 v45, v60, v22, 0'); e('v_dot2_f32_bf16 v46, v61, v22, 0'); e('v_dot2_f32_bf16 v45, v62, v22, v45'); e('v_dot2_f32_bf16 v46, v63, v22, v46')
        k.waitlg(last)
        for f in range(3): self.wsst(R(B+4*f),vL16,61+f)
        e('v_add_f32 v45, v45, v46')
        self.wsst(R(B+12),vL16,65); self.tp0st=self.wsst(R(B+16),vL16,66)
        for r in (8,4,2,1): e('v_add_f32_dpp v45, v45, v45 row_ror:%d row_mask:0xf bank_mask:0xf',r)
        e('v_mov_b32 v46, v45'); e('v_permlane16_swap_b32 v45, v46'); e('v_add_f32 v45, v45, v46')
        e('v_mov_b32 v46, v45'); e('v_permlane32_swap_b32 v45, v46'); e('v_add_f32 v45, v45, v46')
        e('v_mul_f32 v45, 0x%x, v45',f2u(1/512.))
    def ln(self,hooks):
        k=self.k; e=k.e
        for g in range(4):
            X=64+16*g; k.waitvm(self.tx[g])
            for j in range(16):
                s,q=(48+2*g,49+2*g) if j&1==0 else (24,25)
                if j<2:
                    e('v_dot2_f32_bf16 v%d, v%d, v22, 0',s,X+j); e('v_dot2_f32_bf16 v%d, v%d, v%d, 0',q,X+j,X+j)
                else:
                    e('v_dot2_f32_bf16 v%d, v%d, v22, v%d',s,X+j,s); e('v_dot2_f32_bf16 v%d, v%d, v%d, v%d',q,X+j,X+j,q)
            if g in hooks: hooks[g]()
            else: e('s_nop 1')
            e('v_pk_add_f32 %s, %s, v[24:25]',R(48+2*g,2),R(48+2*g,2))
        for r in (8,4,2,1):
            for j in range(8): e('v_add_f32_dpp v%d, v%d, v%d row_ror:%d row_mask:0xf bank_mask:0xf',48+j,48+j,48+j,r)
        e('v_mov_b32 v28, 0x%x',f2u(1/512.))
        for g in range(4): e('v_pk_mul_f32 %s, %s, v[28:29] op_sel_hi:[1,0]',R(48+2*g,2),R(48+2*g,2))
        S=[48,50,52,54]; Q=[49,51,53,55]
        for g in range(4): e('v_fma_f32 v%d, -v%d, v%d, v%d',Q[g],S[g],S[g],Q[g])
        for g in range(4):
            e('v_add_u32 v23, s%d, v43',56+g); e('ds_write_b32 v23, v%d',S[g])
        for g in range(4): e('v_max_f32 v%d, 0, v%d',Q[g],Q[g])
        for g in range(0,4,2): e('v_cvt_pk_bf16_f32 v%d, v%d, v%d',24+g//2,Q[g],Q[g+1])
        for g in range(0,4,2): e('v_lshlrev_b32 v%d, 16, v%d',Q[g],24+g//2); e('v_and_b32 v%d, s%d, v%d',Q[g+1],sMASK,24+g//2)
        for g in range(4): e('v_add_f32 v%d, 0x%x, v%d',Q[g],f2u(1e-5),Q[g])
        for g in range(0,4,2): e('v_cvt_pk_bf16_f32 v%d, v%d, v%d',24+g//2,Q[g],Q[g+1])
        for g in range(0,4,2): e('v_lshlrev_b32 v%d, 16, v%d',Q[g],24+g//2); e('v_and_b32 v%d, s%d, v%d',Q[g+1],sMASK,24+g//2)
        for g in range(4): e('v_sqrt_f32 v%d, v%d',Q[g],Q[g])
        for g in range(0,4,2): e('v_cvt_pk_bf16_f32 v%d, v%d, v%d',26+g//2,S[g],S[g+1])
        for g in range(0,4,2): e('v_cvt_pk_bf16_f32 v%d, v%d, v%d',24+g//2,Q[g],Q[g+1])
        for g in range(0,4,2): e('v_lshlrev_b32 v%d, 16, v%d',S[g],26+g//2); e('v_and_b32 v%d, s%d, v%d',S[g+1],sMASK,26+g//2)
        for g in range(0,4,2): e('v_lshlrev_b32 v%d, 16, v%d',Q[g],24+g//2); e('v_and_b32 v%d, s%d, v%d',Q[g+1],sMASK,24+g//2)
        for g in range(4): e('v_rcp_f32 v%d, v%d',Q[g],Q[g])
        e('s_nop 0')
        for g in range(4): e('v_mul_f32_e64 v%d, -v%d, v%d',S[g],S[g],Q[g])
        self.stamp('stats')
        for g in range(4):
            X=64+16*g
            for i in range(4):
                for j in range(4):
                    x=X+4*i+j; t=24+2*j
                    e('v_lshlrev_b32 v%d, 16, v%d',t,x); e('v_and_b32 v%d, s%d, v%d',t+1,sMASK,x)
                for j in range(4):
                    t=24+2*j
                    e('v_pk_fma_f32 %s, %s, %s, %s op_sel:[0,1,0] op_sel_hi:[1,1,0]',R(t,2),R(t,2),R(48+2*g,2),R(48+2*g,2))
                for j in range(4): e('v_cvt_pk_bf16_f32 v%d, v%d, v%d',X+4*i+j,24+2*j,25+2*j)
                e('ds_write_b128 v%d, %s offset:%d',7 if g==0 else 39+g,R(X+4*i),256*i)
            if 4+g in hooks: hooks[4+g]()
    def phi(self,src,n,dst,t):
        e=self.k.e
        e('v_mov_b32 v28, 0x%x',f2u(1.4426950408889634)); e('v_mov_b32 v30, 0x%x',f2u(1e-6))
        for j in range(0,n,2): e('v_pk_mul_f32 %s, %s, v[28:29] op_sel_hi:[1,0]',R(t+j,2),R(src+j,2))
        for j in range(n):
            e('v_exp_f32_e64 v%d, v%d clamp',t+j,t+j); e('v_max_f32 v%d, 0, v%d',src+j,src+j)
        for j in range(0,n,2): e('v_pk_add_f32 %s, %s, v[30:31] op_sel_hi:[1,0]',R(src+j,2),R(src+j,2))
        for j in range(0,n,2): e('v_pk_add_f32 %s, %s, %s',R(t+j,2),R(t+j,2),R(src+j,2))
        for j in range(0,n,2): e('v_cvt_pk_bf16_f32 v%d, v%d, v%d',dst+j//2,t+j,t+j+1)
    def p1(self):
        k=self.k; e=k.e; tw=self.tw
        def W(c):
            def f():
                for a,b in self.wdma(c): a(); e('s_nop 0'); b()
            return f
        def zf():
            k.waitvm(self.tzero)
            e('s_lshl_b32 s52, s%d, 1',sHG); e('s_add_u32 s52, s52, s%d',sTB); e('s_lshl_b32 s52, s52, 3'); e('s_add_u32 s52, s52, s%d',sW); e('s_lshl_b32 s52, s52, 3'); e('s_add_u32 s52, s52, %d',WS_ZF)
            e('s_cmp_lt_u32 s%d, 2',sTB); e('s_cselect_b32 s52, s52, 0x%x',OOB)
            e('s_mov_b64 exec, 1'); self.wsst(R(vN,2),vZ,52,w=2); e('s_mov_b64 exec, -1')
        def xk():
            for c in range(8):
                e('s_add_u32 s66, s%d, %d',sC0,c); e('s_and_b32 s66, s66, 7'); e('s_lshl_b32 s%d, s66, 7',sXK+c)
        if self.opt.get('nop0'):
            self.ln({0:W(1),1:W(2),2:lambda:(zf(),W(3)()), 4:xk})
            self.stamp('lndone'); self.tp0st=self.tzero
        else:
            pp=self.opt.get('p0at',0)
            hk={2:[zf],4:[xk],5:[W(1)],7:[W(2),W(3)]}
            hk.setdefault(pp,[]).append(self.p0_issue)
            if self.opt.get('w1at') is not None: hk[5]=[]; hk.setdefault(self.opt['w1at'],[]).append(W(1))
            self.ln({g:(lambda fs=fs:[f() for f in fs]) for g,fs in hk.items()})
            self.stamp('lndone')
            self.p0_finish()
        AK,AV,AQ=192,208,224
        WF=[32,24]
        k.waitvm(tw[0],k.lastlg()); e('s_barrier')
        self.stamp('kv0')
        e('v_lshrrev_b32 v46, 4, v%d',vL); e('v_and_b32 v47, 7, v%d',vL); e('v_xor_b32 v47, v47, v46'); e('v_lshrrev_b32 v46, 3, v%d',vL); e('v_lshlrev_b32 v46, 10, v46'); e('v_lshl_add_u32 v46, v47, 4, v46')
        e('v_xor_b32 v47, 64, v46')
        e('s_lshl_b32 s52, s%d, 7',sHG); e('s_add_u32 s52, s52, s54'); e('s_add_u32 s53, s52, 8192')
        pend=[(lambda:self.m0(sW11,L_XR),lambda:self.dma(46,SX,52)),(lambda:self.m0(sW11,L_XR+1024),lambda:setattr(self,'txr',self.dma(47,SX,53)))]
        def kreads(j):
            n=j>>1; c,s=n>>2,n&3; slot=(c%4)*16384; b=WF[n&1]+4*(j&1)
            if j&1==0:
                if s==0: e('v_add_u32 v23, s%d, v10',sXK+c)
                e('ds_read_b128 %s, v23 offset:%d',R(4*n,4,'a'),32*s)
            for t in range(2): last=e('ds_read_b64_tr_b16 %s, v18 offset:%d',R(b+2*t,2),slot+(j&1)*8192+s*2048+t*512)
            return last
        def kbar(j):
            if j%8==0 and j>0:
                c=j>>3
                k.waitvm(tw[c]); e('s_barrier')
                if c>=2: pend.extend(self.wdma(c+2))
        st={}
        def kmf(j):
            n=j>>1
            if j&1 and pend: st['p']=pend.pop(0); st['p'][0]()
            self.mfma(R(AV if j&1 else AK,16),R(4*n,4,'a'),R(WF[n&1]+4*(j&1)),'0' if n==0 else None)
            if st.get('p'): st.pop('p')[1]()
        def kfill(j):
            if j&1==0: return
            c,s=j>>3,(j>>1)&3
            if c==5 and s==0:
                e('s_lshl_b32 s52, s%d, 1',sHG); e('s_and_b32 s53, s%d, 1',sTB); e('s_add_u32 s52, s52, s53'); e('s_lshl_b32 s52, s52, 6'); e('s_add_u32 s60, s52, %d',WS_ZF)
                e('v_and_b32 v46, 3, v%d',vL); e('v_lshlrev_b32 v46, 3, v46')
                e('s_lshl_b32 s61, s%d, 9',sX); e('s_add_u32 s61, s61, %d',WS_XC); e('v_and_b32 v47, 0x1f0, v%d',vL16)
                self.wsld(R(60,2),46,60,w=2); self.tz=self.wsld(R(56),47,61)
            if c==6 and s==0:
                e('s_mul_i32 s52, s%d, 6144',sTT); e('s_mul_i32 s53, s%d, 3072',sHP); e('s_add_u32 s52, s52, s53'); e('s_add_u32 s52, s52, %d',L_P0)
                e('v_add_u32 v40, s52, v%d',vL16)
                e('v_bfe_u32 v41, v%d, 2, 1',vL); e('v_lshlrev_b32 v41, 5, v41'); e('v_and_b32 v42, 0x13, v%d',vL); e('v_add_u32 v41, v41, v42')
            if c==6 and s==1:
                e('v_bfe_u32 v42, v%d, 3, 1',vL); e('v_lshl_add_u32 v41, v42, 2, v41'); e('v_lshrrev_b32 v42, 5, v%d',vL); e('v_lshl_add_u32 v41, v42, 3, v41')
                e('v_lshlrev_b32 v41, 4, v41'); e('v_add_u32 v41, s52, v41')
                e('s_lshl_b32 s53, s%d, 1',sTB); e('s_add_u32 s53, s53, s%d',sTT); e('s_and_b32 s53, s53, 31'); e('s_add_u32 s53, s53, 32')
            if c==6 and s==2:
                e('v_cmp_eq_u32 s[62:63], s53, v%d',vL); e('v_cmp_gt_u32 s[64:65], 32, v%d',vL)
                e('s_mul_i32 s52, s%d, 1536',sW); e('s_add_u32 s53, s52, %d',L_P0); e('v_lshlrev_b32 v42, 2, v%d',vL); e('v_add_u32 v43, s53, v42')
                e('v_cndmask_b32 v45, 0, v45, s[62:63]')
            if c==6 and s==3:
                e('s_and_b32 s53, s%d, 1',sTB); e('s_mul_i32 s53, s53, %d',16*3072); e('s_mul_i32 s55, s%d, 6144',sHG); e('s_add_u32 s53, s53, s55'); e('s_add_u32 s53, s53, s52'); e('s_add_u32 s55, s53, %d',WS_KV)
            if c==7 and s==0:
                for i in range(4): e('v_mov_b32 v%d, v22',144+i)
                for g in range(3): e('v_mov_b32 v%d, 0.5',128+4*g+3)
                e('v_and_b32 v23, 16, v%d',vL) if False else None
        self.pipe(64,3,kreads,kmf,kbar,kfill)
        for a,b in pend: a(); e('s_nop 0'); b()
        self.stamp('kvdone')
        e('s_mov_b32 vcc_lo, 0xffff0000'); e('s_mov_b32 vcc_hi, 0xffff0000')
        PK,PV,TM=48,32,160
        for j in range(8): e('v_cvt_pk_bf16_f32 v%d, v%d, v%d',PV+j,AV+2*j,AV+2*j+1)
        self.phi(AK,16,PK,TM)
        KVA,ZA=160,176
        self.mfma(R(KVA,16),R(PK),R(PV),'0'); self.mfma(R(ZA,16),R(144),R(PK),'0')
        self.mfma(R(KVA,16),R(PK+4),R(PV+4)); self.mfma(R(ZA,16),R(144),R(PK+4))
        Lp=k.newlabel('zp'); Lo=k.newlabel('zo')
        k.waitvm(self.tz)
        e('s_mov_b32 s%d, 0',sSPIN)
        k.label(Lp)
        e('v_cmp_ne_u64 s[52:53], v[60:61], %s',R(vN,2)); e('v_cmp_ne_u64 s[62:63], v[56:57], %s',R(vN,2)); e('s_or_b64 s[52:53], s[52:53], s[62:63]')
        e('s_cbranch_scc0 %s',Lo)
        e('s_add_u32 s%d, s%d, 1',sSPIN,sSPIN); e('s_cmp_gt_u32 s%d, %d',sSPIN,SPIN); e('s_cbranch_scc1 L_end')
        sv=(list(k.vm),k.vmdone,dict(k.pend))
        self.wsld(R(60,2),46,60,w=2); self.wsld(R(56),47,61); e('s_waitcnt vmcnt(0)'); e('s_branch %s',Lp)
        k.vm,k.vmdone,k.pend=sv
        k.label(Lo)
        e('v_cmp_ne_u32 s[52:53], s%d, v58',sLOC); e('s_cmp_eq_u64 s[52:53], 0'); e('s_cselect_b32 s%d, 1, 0',sLOC)
        e('s_cselect_b32 s52, 0, 0x%x',OOB); e('s_cselect_b32 s53, 0x%x, 0',OOB)
        e('v_mov_b32 v%d, 0x%x',vFP,OOB); e('v_mov_b32 v%d, 0x%x',vFG,OOB); e('v_writelane_b32 v%d, s52, 0',vFP); e('v_writelane_b32 v%d, s53, 0',vFG)
        S=128
        for j in range(8): e('v_cndmask_b32 v%d, v%d, v%d, vcc',S+4*(j//3)+j%3,KVA+j,KVA+8+j)
        e('v_cndmask_b32 v45, v45, v%d, s[64:65]',ZA)
        for g in range(3): e('ds_write_b128 v40, %s offset:%d',R(S+4*g),1024*g)
        e('ds_write_b32 v41, v45 offset:%d',2048+8)
        k.waitvm(self.txr,k.lastlg()); e('s_barrier')
        for i in range(6): last=e('ds_read2st64_b32 %s, v43 offset0:%d offset1:%d',R(S+2*i,2),i,i+24)
        for a,b in self.wdma(10)+self.wdma(11): a(); e('s_nop 0'); b()
        k.waitvm(self.tp0st,last)
        for i in range(6): e('v_add_f32 v%d, v%d, v%d',S+2*i,S+2*i,S+2*i+1)
        for i in range(6): e('buffer_atomic_add_f32 v%d, v42, s[%d:%d], s55 offen offset:%d',S+2*i,SWS,SWS+3,256*i)
        self.stamp('atom')
        XR=240
        for q in range(4):
            if q: e('v_xor_b32 v23, %d, v19',16*q)
            e('ds_read_b64 %s, v%d',R(XR+2*q,2),23 if q else 19)
        e('ds_read_b32 v248, v44')
        QB=[32,36,24,28]
        def qreads(j):
            c,s=8+(j>>3),j&7; slot=(c%4)*16384
            for t in range(2): last=e('ds_read_b64_tr_b16 %s, v18 offset:%d',R(QB[j&3]+2*t,2),slot+(s>>2)*8192+(s&3)*2048+t*512)
            return last
        def qbar(j):
            if j==0: k.waitvm(tw[9]); e('s_barrier')
            if j==16: k.waitvm(tw[11]); e('s_barrier')
        def qfill(n):
            if n==2:
                e('s_lshl_b32 s52, s%d, 1',sHG); e('s_add_u32 s52, s52, s%d',sHP); e('s_mul_i32 s52, s52, 3072'); e('s_add_u32 s52, s52, %d',WS_KV); e('s_add_u32 s53, s52, %d',16*3072)
            if n==4:
                e('s_lshl_b32 s60, s%d, 1',sTB); e('s_add_u32 s60, s60, s%d',sTT); e('s_mul_i32 s60, s60, %d',33*1024); e('s_add_u32 s60, s60, %d',WS_O)
            if n==6:
                e('s_lshl_b32 s61, s%d, 1',sHG); e('s_add_u32 s61, s61, s%d',sHP); e('s_lshl_b32 s62, s61, 11'); e('s_add_u32 s62, s62, s60')
            if n==8:
                e('s_lshl_b32 s63, s61, 6'); e('v_lshlrev_b32 v47, 1, v%d',vL)
            if n==10:
                e('s_add_u32 s63, s63, s60'); e('s_add_u32 s63, s63, 32768')
                e('s_lshl_b32 s64, s%d, 3',sTB); e('s_add_u32 s64, s64, s%d',sHG); e('s_lshl_b32 s64, s64, 3'); e('s_add_u32 s64, s64, %d',WS_F1)
            if n==12:
                e('s_lshl_b32 s56, s%d, 17',sW); e('s_lshl_b32 s57, s%d, 7',sHG); e('s_add_u32 s56, s56, s57'); e('v_add_u32 v11, s56, v11'); e('s_lshl_b32 s57, s%d, 14',sW)
            if n==14:
                e('s_lshl_b32 s58, s%d, 2',sQ)
        self.pipe(32,3,qreads,lambda j:self.mfma(R(AQ,16),R(QB[j&3]),R(4*j,4,'a'),'0' if j==0 else None),qbar,qfill)
        self.stamp('qdone')
        PQ=48
        self.phi(AQ,16,PQ,160)
        KL=128
        e('s_mov_b32 s%d, 0',sSPIN); e('v_mov_b32 v28, 0x%x',f2u(16.0))
        Lp=k.newlabel('kvp'); k.label(Lp)
        for r in range(2):
            for g in range(3): self.wsld(R(KL+12*r+4*g),vL16,52+r,off=1024*g)
        e('s_add_u32 s%d, s%d, 1',sSPIN,sSPIN); e('s_cmp_gt_u32 s%d, %d',sSPIN,SPIN); e('s_cbranch_scc1 L_end')
        e('s_waitcnt vmcnt(0)')
        for i in range(0,6,2): e('v_min_f32 v%d, v%d, v%d',KL+4*i+3,KL+4*i+3,KL+4*i+7)
        e('v_min3_f32 v%d, v%d, v%d, v%d',KL+3,KL+3,KL+11,KL+19)
        e('v_cmp_neq_f32 vcc, v%d, v28',KL+3)
        e('s_cbranch_vccnz %s',Lp)
        self.stamp('kvok')
        def wo(i):
            e('s_add_u32 s59, s58, %d',i); e('s_and_b32 s59, s59, 15'); e('s_lshl_b32 s65, s59, 10'); e('s_add_u32 m0, s65, s57'); e('s_lshl_b32 s59, s59, 13')
            self.two=self.dma(11,SWO,59)
        self.wo=wo
        for g in range(3):
            e('v_pk_add_f32 %s, %s, %s',R(KL+4*g,2),R(KL+4*g,2),R(KL+12+4*g,2)); e('v_add_f32 v%d, v%d, v%d',KL+4*g+2,KL+4*g+2,KL+12+4*g+2)
        ZB=160
        sel=[KL+4*(j//3)+j%3 for j in range(8)]
        AA,AB,WB=56,60,36
        for j in range(4): e('v_cvt_pk_bf16_f32 v%d, v%d, v%d',AA+j,sel[2*j],sel[2*j+1])
        for j in range(8): e('v_mov_b32_dpp v%d, v%d row_newbcast:%d row_mask:0xf bank_mask:0xf',ZB+j,KL+10,j)
        for j in range(4): e('v_cvt_pk_bf16_f32 v%d, v%d, v%d',AB+j,ZB+2*j,ZB+2*j+1)
        e('s_nop 0')
        for j in range(4): e('v_permlane16_swap_b32 v%d, v%d',AA+j,AB+j)
        e('s_nop 0')
        self.mfma(R(AK,16),R(AA),R(PQ),'0'); self.mfma(R(AV,16),R(AB),R(PQ+4),'0')
        for j in range(8): e('v_mov_b32_dpp v%d, v%d row_newbcast:%d row_mask:0xf bank_mask:0xf',ZB+j,KL+10,8+j)
        for j in range(4): e('v_cvt_pk_bf16_f32 v%d, v%d, v%d',WB+j,ZB+2*j,ZB+2*j+1)
        e('v_add_f32 v28, 0x%x, v%d',f2u(1e-6),AK+8); e('v_add_f32 v30, 0x%x, v%d',f2u(1e-6),AV+8); e('v_rcp_f32 v28, v28'); e('v_rcp_f32 v30, v30')
        for h,A in enumerate((AK,AV)):
            for j in range(0,8,2): e('v_pk_mul_f32 %s, %s, %s op_sel_hi:[1,0]',R(A+j,2),R(A+j,2),R(28+2*h,2))
            for j in range(4): e('v_cvt_pk_bf16_f32 v%d, v%d, v%d',PQ+4*h+j,A+2*j,A+2*j+1)
            self.wsst(R(PQ+4*h),vL16,62,off=1024*h)
            self.mfma(R(160+16*h,16),R(WB),R(PQ+4*h),'0')
        self.stamp('ost')
        wo(0); wo(1)
        e('v_add_f32 v28, v160, v184'); e('v_cvt_pk_bf16_f32 v28, v28, v28')
        e('s_mov_b64 exec, 0xffffffff'); tst=self.wsst('v28',47,63,w=0); e('s_mov_b64 exec, -1')
        for i in range(2,self.opt.get('nwo',6)): wo(i)
        self.stamp('woiss')
        k.waitvm(tst); self.stamp('oack'); e('s_barrier')
        e('s_cmp_eq_u32 s%d, 0',sW); e('s_cselect_b32 s64, s64, 0x%x',OOB)
        self.flag2(64)
        self.stamp('oflag')
    def poll_o(self):
        k=self.k; e=k.e
        e('v_and_b32 v17, 7, v%d',vL); e('v_lshlrev_b32 v17, 3, v17'); e('s_lshl_b32 s52, s%d, 6',sTB); e('s_add_u32 s52, s52, %d',WS_F1)
        self.poll(17,52,14)
    def epoch(self):
        k=self.k; e=k.e
        e('s_cmp_eq_u32 s2, 0'); e('s_cselect_b32 s52, %d, 0x%x',WS_EPOCH,OOB)
        e('s_mov_b64 exec, 1'); self.wsst(R(vN,2),vZ,52,w=2,flags=''); e('s_mov_b64 exec, -1')
    def wgu(self,i,half):
        k=self.k; e=k.e; slot=[131072,0,32768,65536,98304,131072][i]
        def f0():
            e('s_add_u32 s66, s%d, %d',self.sWG,i*32768+half*4096); self.m0(self.sW13,slot+half*4096)
        out=[]
        for q in range(4):
            def f(q=q):
                if q==0: f0(); e('s_nop 0') if False else None
                self.tg[i]=self.dma(vL16,SWS,66,'sc1',off=1024*q)
            out.append(f)
        return out
    def p2(self):
        k=self.k; e=k.e; o=self.opt
        for i in range(o.get('nwo',6),16): self.wo(i)
        self.sWG,self.sW13,sO,sT=84,85,86,87
        e('s_lshl_b32 s66, s%d, 1',sHG); e('s_and_b32 s67, s%d, 1',sQ); e('s_add_u32 s88, s66, s67')
        e('s_mul_i32 s84, s88, %d',6*32768); e('s_lshl_b32 s85, s%d, 13',sW); e('s_add_u32 s84, s84, s85'); e('s_add_u32 s84, s84, %d',WS_WGU)
        e('s_lshl_b32 s86, s%d, 1',sTB); e('s_add_u32 s87, s86, s%d',sTT)
        e('s_mul_i32 s86, s87, %d',33*1024); e('s_lshl_b32 s66, s%d, 12',sHP); e('s_add_u32 s86, s86, s66'); e('s_add_u32 s86, s86, %d',WS_O)
        e('s_lshl_b32 s89, s%d, 15',sTT); e('s_add_u32 s90, s89, s66')
        e('s_add_u32 s89, s89, %d',L_O); e('v_add_u32 v10, s89, v%d',vL16)
        e('v_bfe_u32 v14, v%d, 2, 2',vL); e('v_lshlrev_b32 v14, 6, v14'); e('v_and_b32 v15, 3, v%d',vL); e('v_lshl_add_u32 v14, v15, 3, v14')
        e('v_bfe_u32 v15, v%d, 4, 1',vL); e('v_lshl_add_u32 v14, v15, 5, v14'); e('v_lshrrev_b32 v15, 5, v%d',vL); e('v_lshl_add_u32 v14, v15, 9, v14'); e('v_add_u32 v12, s89, v14')
        self.tg={}
        self.poll_o()
        self.stamp('o_ok')
        to={}
        for c in range(4):
            e('s_add_u32 s52, s86, %d',c*8192); self.m0(90,L_O+c*8192)
            if c==0: e('s_nop 0')
            for q in range(4): to[c]=self.dma(vL16,SWS,52,'sc1',off=1024*q)
        self.epoch()
        pend=self.wgu(0,0)+self.wgu(0,1)
        ACC=192; PB=[24,32,128,136]
        def reads(j):
            b=PB[j&3]
            e('ds_read_b128 %s, v10 offset:%d',R(b+4),j*1024)
            for t in range(2): last=e('ds_read_b64_tr_b16 %s, v13 offset:%d',R(b+2*t,2),L_WO+j*2048+t*1024)
            return last
        st={}
        def bar(j):
            if j%8==0:
                k.waitvm(to[j>>3]); e('s_barrier')
                if j==0: self.stamp('o0')
                if j==16:
                    e('s_lshl_b32 s66, s%d, 12',sHP); e('s_sub_u32 s52, s86, s66'); e('s_add_u32 s52, s52, 32768'); e('s_mov_b32 m0, s89'); e('s_nop 0')
                    st['ext']=self.dma(vL16,SWS,52,'sc1')
        def fill(j):
            if pend and j>=14 and j%2==0: pend.pop(0)()
            if j==1:
                for i in range(4): e('v_mov_b32 v%d, v22',144+i)
            if j==3: e('s_lshl_b32 s60, s87, 5'); e('s_lshl_b32 s61, s%d, 1',sHG); e('s_add_u32 s61, s61, s%d',sHP)
            if j==5: e('s_lshl_b32 s62, s61, 1'); e('s_add_u32 s60, s60, s62'); e('s_lshl_b32 s60, s60, 10'); e('s_add_u32 s60, s60, %d',WS_H)
            if j==7: e('s_lshl_b32 s62, s87, 4'); e('s_add_u32 s62, s62, s61'); e('s_lshl_b32 s63, s62, 7'); e('s_add_u32 s63, s63, %d',WS_STAT)
            if j==9: e('s_lshl_b32 s62, s62, 3'); e('s_add_u32 s62, s62, %d',WS_F2); e('v_lshlrev_b32 v47, 2, v%d',vL)
            if 11<=j<27:
                r=j-11; x=240+r//2
                if r&1: e('v_and_b32 v%d, s%d, v%d',160+r,sMASK,x)
                else: e('v_lshlrev_b32 v%d, 16, v%d',160+r,x)
        self.pipe(32,3,reads,lambda j:self.mfma(R(ACC,16),R(PB[j&3]),R(PB[j&3]+4),'0' if j==0 else None),bar,fill)
        self.stamp('p2mm')
        k.waitvm(st['ext']); e('s_barrier')
        e('ds_read_b64_tr_b16 v[24:25], v12'); t=e('ds_read_b64_tr_b16 v[26:27], v12 offset:256')
        for f in self.wgu(1,0): f()
        k.waitlg(t)
        self.mfma(R(208,16),R(144),R(24),'0')
        for j in range(0,16,2): e('v_pk_add_f32 %s, %s, %s',R(ACC+j,2),R(ACC+j,2),R(160+j,2))
        for j in range(8): e('v_cvt_pk_bf16_f32 v%d, v%d, v%d',240+j,ACC+2*j,ACC+2*j+1)
        e('v_add_f32 v28, v248, v208')
        for j in range(0,16,2): e('v_pk_add_f32 %s, %s, v[28:29] op_sel_hi:[1,0] neg_lo:[0,1] neg_hi:[0,1]',R(ACC+j,2),R(ACC+j,2))
        for j in range(8): e('v_cvt_pk_bf16_f32 v%d, v%d, v%d',128+j,ACC+2*j,ACC+2*j+1)
        self.wsst(R(128),vL16,60); self.wsst(R(132),vL16,60,off=1024)
        for j in range(8):
            d=24+(j&1)
            e('v_dot2_f32_bf16 v%d, v%d, v%d, %s',d,128+j,128+j,'0' if j<2 else 'v%d'%d)
        e('v_add_f32 v24, v24, v25'); e('v_mov_b32 v25, v24'); e('v_permlane32_swap_b32 v24, v25'); e('v_add_f32 v24, v24, v25')
        e('s_mov_b64 exec, 0xffffffff'); tst=self.wsst('v24',47,63,w=1); e('s_mov_b64 exec, -1')
        self.stamp('hst')
        for f in self.wgu(1,1)+(self.wgu(2,0) if o.get('g2',1) else []): f()
        k.waitvm(tst)
        self.flag2(62)
        self.stamp('hflag')
    def p4_consts(self):
        k=self.k; e=k.e
        e('s_mul_i32 s92, s%d, 6',sW)
        e('s_lshl_b32 s93, s%d, 2',sW); e('s_cmp_eq_u32 s%d, 3',sW); e('s_cselect_b32 s66, 1, 0'); e('s_sub_u32 s93, s93, s66'); e('s_add_u32 s93, s93, 72')
        e('s_cmp_ge_u32 s%d, 2',sW); e('s_cselect_b32 s94, 2, 3'); e('s_add_u32 s94, s94, s93')
        e('s_mul_i32 s95, s%d, %d',sHG,172*1024); e('s_add_u32 s95, s95, %d',WS_WD)
        e('s_mul_i32 s96, s%d, %d',sTB,172*1024); e('s_add_u32 s96, s96, %d',WS_A)
        for r in (92,93,94): e('s_lshl_b32 s%d, s%d, 10',r,r)
    def fragloads(self,base,regs):
        k=self.k; e=k.e; out=[]; tok={}
        for j0,n,sr,add in [(0,4,92,0),(4,2,92,4),(6,4,92,24),(10,2,92,28),(12,4,92,48),(16,2,92,52),(18,3,93,0),(21,1,94,0)]:
            for c in range(2):
                for q in range(n):
                    def f(j=j0+q,q=q,c=c,sr=sr,add=add):
                        if q==0:
                            e('s_add_u32 s67, s%d, s%d',base,sr)
                            if add or c: e('s_add_u32 s67, s67, %d',(add+86*c)*1024)
                        tok[(j,c)]=self.wsld(regs(j,c),vL16,67,off=1024*q)
                    out.append(f)
        return out,tok
    @staticmethod
    def wreg(j,c):
        n=2*j+c; return R(128+4*n,4,'a') if n<32 else R(128+4*(n-32))
    @staticmethod
    def areg(j,c):
        n=2*j+c; return R(4*n,4,'a') if n<32 else R(64+4*(n-32))
    def gelu(self,A,dst):
        e=self.k.e; out=[]; T=32
        C1,C3,IR=20,21,19
        def op(fmt,*a): out.append(lambda:e(fmt,*a))
        for h in range(2):
            js=range(4*h,4*h+4)
            for j in js: op('v_mul_f32 v%d, v%d, v%d',T+j,A+j,A+j)
            for j in js: op('v_fma_f32 v%d, v%d, v%d, v%d',T+j,T+j,C3,C1)
            for j in js: op('v_mul_f32 v%d, v%d, v%d',T+j,T+j,A+j)
            for j in js: op('v_exp_f32 v%d, v%d',T+j,T+j); op('v_mul_f32 v%d, v%d, v%d',A+j,A+j,A+8+j)
            for j in js: op('v_fma_f32 v%d, v%d, v%d, v%d',T+j,T+j,IR,IR)
            for j in js: op('v_rcp_f32 v%d, v%d',T+j,T+j)
            for j in js: op('v_mul_f32 v%d, v%d, v%d',A+j,A+j,T+j)
            for j in (4*h,4*h+2): op('v_cvt_pk_bf16_f32 v%d, v%d, v%d',dst+j//2,A+j,A+j+1)
        return out
    def p3(self):
        k=self.k; e=k.e; o=self.opt
        self.p4_consts()
        e('s_lshr_b32 s66, s%d, 1',sQ); e('s_lshl_b32 s66, s66, 2'); e('s_lshl_b32 s67, s%d, 3',sX); e('s_add_u32 s66, s66, s67'); e('s_add_u32 s87, s66, s%d',sW)
        e('s_lshl_b32 s60, s87, 15'); e('s_add_u32 s60, s60, %d',WS_H)
        e('s_lshl_b32 s61, s87, 11'); e('s_add_u32 s61, s61, %d',WS_STAT)
        e('s_lshl_b32 s62, s87, 7'); e('s_add_u32 s62, s62, %d',WS_F2)
        e('s_mul_i32 s66, s88, 6'); e('s_mul_i32 s63, s87, 86'); e('s_add_u32 s63, s63, s66'); e('s_lshl_b32 s63, s63, 10'); e('s_add_u32 s63, s63, %d',WS_A); e('s_add_u32 s65, s63, 4096')
        e('s_mul_i32 s64, s87, 96'); e('s_add_u32 s64, s64, s66'); e('s_lshl_b32 s64, s64, 3'); e('s_add_u32 s64, s64, %d',WS_F3)
        e('v_and_b32 v17, 15, v%d',vL); e('v_lshlrev_b32 v17, 3, v17'); e('v_lshlrev_b32 v16, 2, v%d',vL)
        e('v_add_u32 v10, 65536, v%d',vL16); e('v_add_u32 v11, 131072, v%d',vL16)
        wl,self.twd=self.fragloads(95,self.wreg)
        Lskip=k.newlabel('p3skip'); Lshort=k.newlabel('p3short'); Ldone=k.newlabel('p3done')
        e('s_cmp_ge_u32 s88, 15'); e('s_cbranch_scc1 %s',Lskip)
        pend=[]
        if not o.get('g2',1): pend+=self.wgu(2,0)
        for f in self.wgu(2,1): f()
        tF01=self.tg[1]
        self.poll(17,62,14)
        self.stamp('h_ok')
        th={}
        hl=[]
        for s in range(32):
            def f(s=s):
                if s%4==0: e('s_add_u32 s52, s60, %d',s*1024)
                th[s]=self.wsld(R(4*s,4,'a'),vL16,52,off=1024*(s%4))
            hl.append(f)
        sl=[(lambda m=m: th.__setitem__(('s',m),self.wsld('v%d'%(40+m),16,61,off=256*m,w=1))) for m in range(8)]
        NH=o.get('nh0',10)
        for f in hl[:NH]: f()
        pend=hl[NH:]+sl+pend+self.wgu(3,0)+self.wgu(3,1)+self.wgu(4,0)+self.wgu(4,1)
        e('s_barrier')
        ACC=[192,208,224]; WB=[24,28,48,52]
        seq=[(f,s) for s in range(32) for f in range(2)]+[(f,s) for f in range(2,6) for s in range(32)]
        slotoff=[131072,0,32768,65536,98304,131072]
        def reads(j):
            f,s=seq[j]; off=slotoff[f]+s*1024
            v,off=(vL16,off) if off<65536 else ((10,off-65536) if off<131072 else (11,off-131072))
            return e('ds_read_b128 %s, v%d offset:%d',R(WB[j&3]),v,off)
        epi=[]; st={}; tst={}
        def stats():
            out=[]
            def op(fmt,*a): out.append(lambda:e(fmt,*a))
            out.append(lambda:k.waitvm(th[('s',7)]))
            for a,b in ((40,41),(42,43),(44,45),(46,47)): pass
            op('v_add_f32 v40, v40, v41'); op('v_add_f32 v42, v42, v43'); op('v_add_f32 v44, v44, v45'); op('v_add_f32 v46, v46, v47')
            op('v_add_f32 v40, v40, v42'); op('v_add_f32 v44, v44, v46'); op('v_add_f32 v40, v40, v44'); op('v_mov_b32 v41, v40')
            op('s_nop 0'); op('v_permlane32_swap_b32 v40, v41'); op('v_add_f32 v40, v40, v41'); op('v_mul_f32 v40, 0x%x, v40',f2u(1/512.))
            op('v_cvt_pk_bf16_f32 v41, v40, v40'); op('v_lshlrev_b32 v40, 16, v41'); op('v_add_f32 v40, 0x%x, v40',f2u(1e-5))
            op('v_cvt_pk_bf16_f32 v41, v40, v40'); op('v_lshlrev_b32 v40, 16, v41'); op('v_sqrt_f32 v40, v40'); op('s_nop 0')
            op('v_cvt_pk_bf16_f32 v41, v40, v40'); op('v_lshlrev_b32 v40, 16, v41'); op('v_rcp_f32 v41, v40'); op('v_mul_f32 v19, v40, v40')
            K0=-2*0.7978845608028654*1.4426950408889634
            op('v_mul_f32 v20, 0x%x, v41',f2u(K0)); op('v_mul_f32 v41, v41, v41'); op('v_mul_f32 v41, 0x%x, v41',f2u(0.044715)); op('v_mul_f32 v21, v20, v41')
            return out
        def unit_epi(u):
            D=56+4*(u&1)
            def store(): tst[u]=self.wsst(R(D),vL16,63 if u<4 else 65,off=1024*(u&3))
            return self.gelu(ACC[u%3],D)+[store]
        def flag(u):
            def f():
                k.waitvm(tst[u]); self.flag2(64,off=8*u)
            return f
        def bar(j):
            f,s=seq[j]
            if f>=2 and s==0:
                if f==2:
                    pass
                k.waitvm(self.tg[f]); e('s_barrier')
                if f==3: pend[0:0]=self.wgu(5,0)+self.wgu(5,1)
        def mf(j):
            f,s=seq[j]
            if f<2 and j%2==0: k.waitvm(th[s])
            self.mfma(R(ACC[f%3],16),R(WB[j&3]),R(4*s,4,'a'),'0' if s==0 else None)
        sst=stats()
        def fill(j):
            if j<64:
                if pend: pend.pop(0)()
                if j>=44:
                    for _ in range(2):
                        if sst: sst.pop(0)()
            else:
                jj=j-64
                if jj==0:
                    assert not sst
                    pend.extend(wl)
                    epi.extend(unit_epi(0)+unit_epi(1)+[flag(0)])
                if jj==33: epi.extend(unit_epi(2)+[flag(1)])
                if jj==65: epi.extend(unit_epi(3)+[flag(2)])
                if jj==97: epi.extend(unit_epi(4)+[flag(3)])
                if jj%2==1 and pend: pend.pop(0)()
                n=3 if (jj<96) else 3
                if jj in (0,32,64,96): n=0
                for _ in range(n):
                    if epi: epi.pop(0)()
        tok={}
        L=3; n=len(seq)
        for j in range(L): tok[j]=reads(j)
        for j in range(n):
            k.waitlg(tok[j]); mf(j)
            if j==63-L+1-1+0 and False: pass
            if j+L<n:
                if j+L==64:
                    e('s_cmp_eq_u32 s88, 14'); e('s_cbranch_scc1 %s',Lshort)
                    snap=(list(k.vm),k.vmdone,list(k.lg),k.lgdone,dict(k.pend),list(k.hist),list(pend),list(sst),dict(tok))
                bar(j+L); tok[j+L]=reads(j+L)
            fill(j)
            if j==63: self.stamp('pair')
        self.stamp('p3mm')
        while pend: pend.pop(0)()
        while epi: epi.pop(0)()
        for f in unit_epi(5): f()
        flag(4)(); self.stamp('a5st'); flag(5)()
        self.stamp('aflag')
        e('s_branch %s',Ldone)
        main=(list(k.vm),k.vmdone,list(k.lg),k.lgdone,dict(k.pend))
        k.label(Lshort)
        k.vm,k.vmdone,k.lg,k.lgdone,k.pend,k.hist,_,sst2,tok=snap
        for f in sst2: pass
        for j in range(64-L,64):
            if j>64-L: k.waitlg(tok[j]); mf(j)
        for f in sst2: f()
        for u in range(2):
            for f in unit_epi(u): f()
        e('s_waitcnt vmcnt(0)'); self.flag2(64,off=0); self.flag2(64,off=8)
        k.label(Lskip)
        wl2,_=self.fragloads(95,self.wreg)
        k.check=False
        for f in wl2: f()
        e('s_waitcnt vmcnt(0) lgkmcnt(0)')
        k.check=True
        k.label(Ldone)
        k.vm,k.vmdone,k.lg,k.lgdone,k.pend=main
    def p4(self):
        k=self.k; e=k.e; o=self.opt
        e('v_min_u32 v14, 43, v%d',vL); e('v_cmp_le_u32 vcc, 22, v14'); e('v_subrev_u32 v15, 22, v14'); e('v_cndmask_b32 v14, v14, v15, vcc')
        e('v_cndmask_b32 v16, 0, 1, vcc')
        e('v_mul_u32_u24 v15, 43, v14'); e('v_lshrrev_b32 v15, 8, v15')
        e('v_mul_u32_u24 v17, 18, v15'); e('v_add_u32 v17, v17, v14'); e('s_lshr_b32 s52, s92, 10'); e('v_add_u32 v17, s52, v17')
        e('s_lshr_b32 s52, s93, 10'); e('s_lshr_b32 s53, s94, 10'); e('v_subrev_u32 v15, 18, v14'); e('v_add_u32 v15, s52, v15'); e('v_min_u32 v15, s53, v15')
        e('v_cmp_le_u32 vcc, 18, v14'); e('v_cndmask_b32 v17, v17, v15, vcc')
        e('v_mul_u32_u24 v16, 96, v16'); e('v_add_u32 v17, v17, v16'); e('v_lshlrev_b32 v17, 3, v17')
        e('s_mul_i32 s52, s%d, %d',sTB,2*96*8); e('s_add_u32 s52, s52, %d',WS_F3)
        ACC=[192,208,224,176]
        for r in range(16):
            x=240+r//2
            if r&1: e('v_and_b32 v%d, s%d, v%d',24+r,sMASK,x)
            else: e('v_lshlrev_b32 v%d, 16, v%d',24+r,x)
        for t in range(4):
            e('s_cmp_eq_u32 s%d, %d',sW,t); e('s_cselect_b32 s53, -1, 0')
            for r in range(16): e('v_and_b32 v%d, s53, v%d',ACC[t]+r,24+r)
        e('v_and_b32 v14, 31, v%d',vL); e('v_mul_u32_u24 v14, 272, v14'); e('v_lshrrev_b32 v15, 5, v%d',vL); e('v_lshl_add_u32 v18, v15, 4, v14'); e('s_mul_i32 s53, s%d, 17408',sW); e('v_add_u32 v18, s53, v18')
        e('v_lshrrev_b32 v14, 3, v%d',vL); e('v_and_b32 v15, 7, v%d',vL); e('v_mul_u32_u24 v19, 272, v14'); e('v_lshl_add_u32 v19, v15, 5, v19'); e('s_mul_i32 s53, s%d, %d',sW,16*272); e('v_add_u32 v19, s53, v19')
        e('v_lshlrev_b32 v20, 10, v14'); e('v_lshl_add_u32 v20, v15, 4, v20')
        e('s_lshl_b32 s60, s%d, 2',sTB); e('s_add_u32 s60, s60, s%d',sW); e('s_lshl_b32 s60, s60, 14'); e('s_lshl_b32 s53, s%d, 7',sHG); e('s_add_u32 s60, s60, s53'); e('s_add_u32 s61, s60, 8192')
        self.poll(17,52,14)
        self.stamp('a_ok')
        al,ta=self.fragloads(96,self.areg)
        NA=o.get('na0',10)
        for f in al[:NA]: f()
        pend=al[NA:]
        Ls=k.newlabel('p4s')
        for j in range(22):
            if j==21:
                while pend: pend.pop(0)()
                e('s_cmp_ge_u32 s%d, 2',sW); e('s_cbranch_scc1 %s',Ls)
            for tt in range(2):
                while (j,tt) not in ta: pend.pop(0)()
                k.waitvm(ta[(j,tt)])
                for ct in range(2):
                    self.mfma(R(ACC[tt+2*ct],16),self.wreg(j,ct),self.areg(j,tt))
                    if pend and ct==0: pend.pop(0)()
        k.label(Ls)
        self.stamp('p4mm')
        for tt in range(2):
            for ct in range(2):
                for q in range(4): last=e('ds_write_b128 v18, %s offset:%d',R(ACC[tt+2*ct]+4*q),tt*32*272+ct*128+q*32)
        k.waitlg(last); e('s_barrier')
        for r in range(2):
            for p in range(4):
                for h in range(2): last=e('ds_read_b128 %s, v19 offset:%d',R(64+32*r+8*p+4*h),p*17408+r*8*272+h*16)
            self.tl=getattr(self,'tl',{}); self.tl[r]=last
        for r in range(2):
            k.waitlg(self.tl[r]); B=64+32*r
            for j in range(0,8,2):
                e('v_pk_add_f32 %s, %s, %s',R(B+j,2),R(B+j,2),R(B+8+j,2)); e('v_pk_add_f32 %s, %s, %s',R(B+16+j,2),R(B+16+j,2),R(B+24+j,2))
            for j in range(0,8,2): e('v_pk_add_f32 %s, %s, %s',R(B+j,2),R(B+j,2),R(B+16+j,2))
            for j in range(4): e('v_cvt_pk_bf16_f32 v%d, v%d, v%d',B+8+j,B+2*j,B+2*j+1)
            e('buffer_store_dwordx4 %s, v20, s[%d:%d], s%d offen',R(B+8),SO,SO+3,60+r)
def report(g,s):
    print('nops',g.k.nops,'lines',len(s.split('\n')))
    import collections
    c=collections.Counter()
    for n,p,t in g.k.noplog: c[(p.split()[0],t.split()[0])]+=n
    print(c.most_common(20))
if __name__=='__main__':
    stop=sys.argv[1] if len(sys.argv)>1 else None
    if stop=='all': stop=None
    g=G(stamps=True,stop=stop); s=g.build(); open('k_t.s','w').write(s); report(g,s)
    import harness, cdna_launch as CL
    harness.build('k_t.s'); print(CL.address_register_problem('k_t.co', KN))
```

```python
import sys, struct
from kasm import *
NAME='sequential_preLN__linear_attn_block__geglu_ffn__prompt'
KN=NAME+'_kernel'
def f2u(x): return struct.unpack('<I',struct.pack('<f',x))[0]
WS_EPOCH=0x0
WS_ZF   =0x1000
WS_F1   =0x2000
WS_F2   =0x3000
WS_XC   =0x6000
WS_F3   =0x8000
WS_KV   =0x40000
WS_STAT =0x80000
WS_O    =0x100000
WS_H    =0x340000
WS_A    =0x580000
WS_WGU  =0xB00000
WS_WD   =0xE00000
WS_STAMP=0x1000000
WS_SIZE =0x1100000
OOB=0x7F000000
XNP=1040
L_RING=66560
L_P0=L_RING+65536
L_XR=L_P0+12288
L_MEAN=L_P0+24576
L_WO=0
L_O=65536
L_W=[131072-0,0,32768,65536]
LDS=163840
L_W=[LDS-32768+0,0,32768,65536]
SPIN=400000
SX,SW,SWO,SG,SU,SD,SO,SWS=4,8,12,16,20,24,28,32
sW,sX,sLOC,sHG,sQ,sTB,sN0,sN1=36,37,38,39,40,41,42,43
sC0=44; sTT=45; sHP=46; sW11=47
sSPIN=68; sMASK=69
sWK=8*0+84
sXK=92
STAMP0=70
def srd(k,d,lo,nbytes):
    k.e('s_mov_b32 s%d, s%d',d,lo); k.e('s_and_b32 s%d, s%d, 0xffff',d+1,lo+1); k.e('s_mov_b32 s%d, 0x%x',d+2,nbytes); k.e('s_mov_b32 s%d, 0x00020000',d+3)
def R(b,n=4,p='v'): return '%s[%d:%d]'%(p,b,b+n-1)
vL,vL16,vZ,vN=1,2,3,4
vST=255
vFP,vFG=249,250
class G:
    def __init__(self, stamps=False, stop=None, opt=None):
        self.k=K(); self.stamps=stamps; self.stop=stop; self.nst=0; self.names=[]; self.opt=opt or {}; self.pst=[]
    def stamp(self,name):
        if not self.stamps: return
        if self.opt.get('only') and name not in self.opt['only']: return
        k=self.k
        if len(self.pst)==7: self.flush_stamps()
        i=len(self.pst); k.e('s_memrealtime s[%d:%d]',STAMP0+2*i,STAMP0+2*i+1); self.pst.append(self.nst); self.nst+=1; self.names.append(name)
    def flush_stamps(self):
        k=self.k
        if not self.pst: return
        k.e('s_waitcnt lgkmcnt(0)')
        for i,n in enumerate(self.pst): k.e('v_writelane_b32 v%d, s%d, %d',vST,STAMP0+2*i,n)
        self.pst=[]
    def mfma(self,d,a,b,c=None):
        self.k.e('v_mfma_f32_32x32x16_bf16 %s, %s, %s, %s',d,a,b,c if c is not None else d)
    def m0(self,sr,imm):
        if sr is None: self.k.e('s_mov_b32 m0, %d',imm)
        else: self.k.e('s_add_u32 m0, s%d, %d',sr,imm)
    def dma(self,voff,srd_,soff,flags='',off=0):
        return self.k.e('buffer_load_dwordx4 v%d, s[%d:%d], s%d offen %s%s lds',voff,srd_,srd_+3,soff,('offset:%d '%off) if off else '',flags)
    def wsld(self,dst,voff,soff,off=0,w=4,flags='sc1'):
        return self.k.e('buffer_load_dword%s %s, v%d, s[%d:%d], s%d offen %s%s',{1:'',2:'x2',4:'x4'}[w],dst,voff,SWS,SWS+3,soff,('offset:%d '%off) if off else '',flags)
    def wsst(self,src,voff,soff,off=0,w=4,flags='sc1'):
        return self.k.e('buffer_store_%s %s, v%d, s[%d:%d], s%d offen %s%s',{0:'short',1:'dword',2:'dwordx2',4:'dwordx4'}[w],src,voff,SWS,SWS+3,soff,('offset:%d '%off) if off else '',flags)
    def poll(self,vaddr,sbase,vt):
        k=self.k; e=k.e
        e('s_mov_b32 s%d, 0',sSPIN)
        p=k.newlabel('poll'); k.label(p)
        self.wsld(R(vt,2),vaddr,sbase,w=2)
        e('s_add_u32 s%d, s%d, 1',sSPIN,sSPIN); e('s_cmp_gt_u32 s%d, %d',sSPIN,SPIN); e('s_cbranch_scc1 L_end')
        e('s_waitcnt vmcnt(0)')
        e('v_cmp_ne_u64 vcc, %s, %s',R(vt,2),R(vN,2))
        e('s_cbranch_vccnz %s',p)
    def flag(self,soff):
        k=self.k; e=k.e
        a=k.newlabel('fg'); b=k.newlabel('fe')
        e('s_mov_b64 exec, 1')
        e('s_cmp_eq_u32 s%d, 0',sLOC); e('s_cbranch_scc1 %s',a)
        self.wsst(R(vN,2),vZ,soff,w=2,flags='')
        e('s_branch %s',b)
        k.label(a); k.vm.pop()
        t=self.wsst(R(vN,2),vZ,soff,w=2)
        k.label(b)
        e('s_mov_b64 exec, -1')
        return t
    def pipe(self,n,L,reads,mf,bar=None,fill=None,wait_every=1):
        k=self.k; tok={}
        for j in range(min(L,n)):
            if bar: bar(j)
            tok[j]=reads(j)
        for j in range(n):
            if j%wait_every==0: k.waitlg(tok[min(n-1,j+wait_every-1)])
            mf(j)
            if j+L<n:
                if bar: bar(j+L)
                tok[j+L]=reads(j+L)
            if fill: fill(j)
    def flag2(self,soff,off=0):
        self.wsst(R(vN,2),vFP,soff,off=off,w=2,flags='')
        return self.wsst(R(vN,2),vFG,soff,off=off,w=2)
    def bfround(self,v,t):
        e=self.k.e
        e('v_cvt_pk_bf16_f32 v%d, v%d, v%d',t,v,v); e('v_lshlrev_b32 v%d, 16, v%d',v,t)
    def build(self):
        k=self.k; e=k.e
        k.raw('.text\n.globl %s\n.p2align 8\n.type %s,@function\n%s:'%(KN,KN,KN))
        self.stamp('start')
        e('s_load_dwordx4 s[48:51], s[0:1], 0')
        e('s_load_dwordx2 s[64:65], s[0:1], 72')
        e('s_load_dwordx2 s[52:53], s[0:1], 16')
        e('s_load_dwordx4 s[56:59], s[0:1], 32')
        e('s_load_dwordx4 s[60:63], s[0:1], 48')
        e('s_cmp_ge_u32 s2, 256'); e('s_cbranch_scc1 L_end')
        e('v_lshrrev_b32 v6, 6, v0'); e('v_and_b32 v%d, 63, v0',vL); e('v_readfirstlane_b32 s%d, v6',sW)
        e('s_and_b32 s%d, s2, 7',sX); e('s_lshr_b32 s66, s2, 3')
        e('s_and_b32 s%d, s66, 7',sHG); e('s_lshr_b32 s%d, s66, 3',sQ)
        e('s_lshl_b32 s%d, s%d, 2',sTB,sX); e('s_add_u32 s%d, s%d, s%d',sTB,sTB,sQ)
        if self.opt.get('ipf',1):
            k.raw('    s_getpc_b64 s[100:101]\nL_pc:')
            e('s_lshl_b32 s66, s66, 2'); e('s_add_u32 s66, s66, s%d',sW); e('s_min_u32 s66, s66, (L_end-L_pc)/1024-1'); e('s_lshl_b32 s66, s66, 10')
            e('v_lshl_add_u32 v7, v%d, 4, s66',vL)
            e('global_load_dwordx4 v[252:255], v7, s[100:101]') if not self.stamps else e('global_load_dwordx4 v[244:247], v7, s[100:101]')
        self.p1_start()
        self.p1()
        if self.stop!='p1':
            self.p2()
            if self.stop!='p2':
                self.p3()
                if self.stop!='p3': self.p4()
        else:
            self.poll_o(); self.epoch()
        self.stamp('end')
        if self.stamps:
            self.flush_stamps()
            e('s_waitcnt vmcnt(0)')
            e('s_lshl_b32 s48, s2, 2'); e('s_add_u32 s48, s48, s%d',sW); e('s_lshl_b32 s48, s48, 7'); e('s_add_u32 s48, s48, %d',WS_STAMP)
            e('v_lshlrev_b32 v6, 2, v%d',vL); e('s_mov_b64 exec, 0xffffffff')
            self.wsst('v%d'%vST,6,48,w=1,flags='')
            if self.opt.get('dbg') is not None:
                e('s_load_dwordx2 s[52:53], s[0:1], 64'); e('s_waitcnt lgkmcnt(0)')
                srd(k,56,52,256)
                e('v_readlane_b32 s60, v%d, 0',vST); e('s_nop 1'); e('v_subrev_u32 v7, s60, v%d',vST)
                e('s_cmp_eq_u32 s2, %d',self.opt['dbg']); e('s_cselect_b32 s61, 0, 0x%x',OOB); e('s_cmp_eq_u32 s%d, 0',sW); e('s_cselect_b32 s61, s61, 0x%x',OOB)
                e('buffer_store_dword v7, v6, s[56:59], s61 offen')
        k.label('L_end'); e('s_endpgm')
        hdr='; @launch grid=(256,1,1) block=(256,1,1) lds=%d\n.amdgcn_target "amdgcn-amd-amdhsa--gfx950"\n'%LDS
        desc='''.section .rodata,"a"
.p2align 6
.amdhsa_kernel %s
  .amdhsa_next_free_vgpr 512
  .amdhsa_next_free_sgpr 102
  .amdhsa_accum_offset 256
  .amdhsa_group_segment_fixed_size 0
  .amdhsa_kernarg_size 80
  .amdhsa_user_sgpr_count 2
  .amdhsa_user_sgpr_kernarg_segment_ptr 1
  .amdhsa_system_sgpr_workgroup_id_x 1
.end_amdhsa_kernel
'''%KN
        return hdr+k.text()+desc
    def p1_start(self):
        k=self.k; e=k.e
        self.tx={}; self.tw={}
        e('v_lshrrev_b32 v24, 4, v%d',vL); e('v_and_b32 v25, 15, v%d',vL); e('v_lshlrev_b32 v25, 4, v25')
        e('v_lshl_add_u32 v6, v24, 10, v25')
        e('s_lshl_b32 s54, s%d, 2',sTB); e('s_add_u32 s54, s54, s%d',sW); e('s_lshl_b32 s54, s54, 14')
        for g in range(4):
            e('s_add_u32 s66, s%d, %d',sHG,g); e('s_and_b32 s%d, s66, 3',sXK+4+g)
        e('s_lshl_b32 s66, s%d, 12',sXK+4); e('s_add_u32 s55, s54, s66')
        e('v_and_b32 v26, 1, v24'); e('v_lshlrev_b32 v26, 2, v26'); e('v_and_b32 v27, 7, v%d',vL); e('v_xor_b32 v27, v27, v26'); e('v_lshlrev_b32 v27, 4, v27')
        e('v_lshrrev_b32 v26, 3, v%d',vL)
        e('v_mul_u32_u24 v16, 3072, v26'); e('v_add_u32 v16, v16, v27')
        e('s_mul_i32 s66, s%d, %d',sW,16*3072); e('s_lshl_b32 s67, s%d, 7',sHG); e('s_add_u32 s66, s66, s67')
        e('v_add_u32 v16, s66, v16')
        e('s_lshl_b32 s%d, s%d, 1',sC0,sQ); e('s_and_b32 s66, s%d, 1',sX); e('s_add_u32 s%d, s%d, s66',sC0,sC0)
        e('s_mul_i32 s%d, s%d, %d',sWK,sC0,64*3072)
        e('s_lshl_b32 s%d, s%d, 11',sW11,sW)
        e('v_add_u32 v8, 1024, v16'); e('v_add_u32 v9, %d, v16',1024+8*3072); e('v_add_u32 v14, 2048, v16'); e('v_add_u32 v15, %d, v16',2048+8*3072)
        e('s_waitcnt lgkmcnt(0)')
        e('s_load_dwordx2 s[%d:%d], s[64:65], %d',sN0,sN1,WS_EPOCH)
        srd(k,SX,48,2048*1024)
        for i in range(4): self.tx[0]=e('buffer_load_dwordx4 %s, v6, s[%d:%d], s55 offen offset:%d',R(64+4*i),SX,SX+3,256*i)
        srd(k,SW,50,512*3072)
        for f in self.wdma(0): f[0](); e('s_nop 0'); f[1]()
        for g in (1,2,3):
            e('s_lshl_b32 s66, s%d, 12',sXK+4+g); e('s_add_u32 s55, s54, s66')
            for i in range(4): self.tx[g]=e('buffer_load_dwordx4 %s, v6, s[%d:%d], s55 offen offset:%d',R(64+16*g+4*i),SX,SX+3,256*i)
            if g==1: self.consts()
        self.stamp('issued')
    def consts(self):
        k=self.k; e=k.e
        srd(k,SWS,64,WS_SIZE); srd(k,SWO,52,512*1024); srd(k,SG,56,512*2752); srd(k,SU,58,512*2752); srd(k,SD,60,1376*1024); srd(k,SO,62,2048*1024)
        e('v_lshlrev_b32 v%d, 4, v%d',vL16,vL); e('v_mov_b32 v%d, 0',vZ)
        e('s_and_b32 s%d, s%d, 1',sTT,sW); e('s_lshr_b32 s%d, s%d, 1',sHP,sW)
        e('s_mov_b32 s%d, 0xffff0000',sMASK)
        e('v_add_u32 v17, %d, v16',8*3072)
        e('v_lshl_add_u32 v11, v26, 10, v27')
        e('v_mul_u32_u24 v12, 2752, v26'); e('v_add_u32 v12, v12, v27')
        if self.opt.get('tlb'):
            e('v_min_u32 v28, 16, v%d',vL); e('v_lshlrev_b32 v28, 20, v28')
            e('buffer_load_dword v251, v28, s[%d:%d], 0 offen offset:64',SWS,SWS+3)
            e('v_and_b32 v28, 1, v%d',vL); e('v_lshlrev_b32 v28, 20, v28')
            e('buffer_load_dword v251, v28, s[%d:%d], 0 offen',SO,SO+3)
        e('s_mul_i32 s66, s%d, %d',sTB,16*3072); e('s_mul_i32 s67, s%d, 6144',sHG); e('s_add_u32 s66, s66, s67'); e('s_mul_i32 s67, s%d, 1536',sW); e('s_add_u32 s66, s66, s67'); e('s_add_u32 s66, s66, %d',WS_KV)
        e('s_cmp_lt_u32 s%d, 2',sTB); e('s_cselect_b32 s66, s66, 0x%x',OOB)
        for i in range(28,32): e('v_mov_b32 v%d, 0',i)
        e('v_lshlrev_b32 v23, 3, v%d',vL)
        self.wsst(R(28),vL16,66); self.tzero=self.wsst(R(28,2),23,66,off=1024,w=2)
        e('v_mul_u32_u24 v7, %d, v24',XNP); e('v_add_u32 v7, v7, v25')
        e('s_mul_i32 s67, s%d, %d',sW,16*XNP); e('v_add_u32 v7, s67, v7')
        for g in (1,2,3,0):
            e('s_mul_i32 s66, s%d, %d',sXK+4+g,4*XNP); e('v_add_u32 v%d, s66, v7',7 if g==0 else 39+g)
        e('s_lshl_b32 s66, s%d, 6',sW); e('s_add_u32 s66, s66, %d',L_MEAN); e('v_lshl_add_u32 v43, v24, 2, s66')
        for g in range(4): e('s_lshl_b32 s%d, s%d, 4',56+g,sXK+4+g)
        for c in range(1,8):
            e('s_add_u32 s66, s%d, %d',sC0,c); e('s_and_b32 s66, s66, 7'); e('s_mul_i32 s%d, s66, %d',sWK+c,64*3072)
        e('v_bfe_u32 v24, v%d, 2, 2',vL); e('v_bfe_u32 v25, v%d, 1, 1',vL); e('v_bfe_u32 v26, v%d, 4, 1',vL)
        e('v_lshl_add_u32 v25, v26, 1, v25')
        e('v_bfe_u32 v26, v%d, 3, 1',vL); e('v_lshlrev_b32 v26, 2, v26')
        e('v_lshlrev_b32 v24, 7, v24'); e('v_and_b32 v27, 1, v%d',vL); e('v_lshl_add_u32 v24, v27, 3, v24')
        e('v_lshrrev_b32 v27, 5, v%d',vL)
        e('s_lshl_b32 s66, s%d, 2',sHP)
        e('v_add_u32 v28, s66, v25'); e('v_xor_b32 v28, v28, v26'); e('v_lshl_add_u32 v28, v28, 4, v24')
        e('v_lshl_add_u32 v18, v27, 10, v28'); e('v_add_u32 v18, %d, v18',L_RING)
        e('v_lshl_add_u32 v13, v27, 9, v28')
        e('v_bfe_u32 v29, v%d, 1, 1',vL); e('v_xor_b32 v29, v29, v26'); e('v_lshl_add_u32 v29, v29, 4, v24'); e('v_lshl_add_u32 v29, v27, 9, v29')
        e('v_bfe_u32 v20, v%d, 4, 1',vL); e('v_lshl_add_u32 v20, v20, 11, v29')
        e('v_xor_b32 v21, v25, v26'); e('v_lshl_add_u32 v21, v21, 4, v24'); e('v_lshl_add_u32 v21, v27, 9, v21')
        e('s_mul_i32 s66, s%d, 6144',sW); e('s_add_u32 s66, s66, %d',L_P0)
        e('v_add_u32 v20, s66, v20'); e('v_add_u32 v21, s66, v21')
        e('v_and_b32 v28, 31, v%d',vL); e('s_lshl_b32 s66, s%d, 5',sTT); e('v_add_u32 v28, s66, v28')
        e('v_mul_u32_u24 v10, %d, v28',XNP); e('v_lshl_add_u32 v10, v27, 4, v10')
        e('v_bfe_u32 v29, v28, 1, 3'); e('s_lshl_b32 s66, s%d, 2',sHP); e('v_xor_b32 v29, s66, v29'); e('v_lshlrev_b32 v29, 4, v29')
        e('v_lshl_add_u32 v19, v28, 7, v29'); e('v_lshl_add_u32 v19, v27, 3, v19'); e('v_add_u32 v19, %d, v19',L_XR)
        e('v_lshl_add_u32 v44, v28, 2, 0'); e('v_add_u32 v44, %d, v44',L_MEAN)
        e('v_mov_b32 v22, 0x3f803f80')
        e('s_waitcnt lgkmcnt(0)')
        e('s_mul_i32 s%d, s%d, 1664525',sN0,sN0); e('s_add_u32 s%d, s%d, 1013904223',sN0,sN0)
        e('s_mul_i32 s%d, s%d, 22695477',sN1,sN1); e('s_add_u32 s%d, s%d, 0x3c6ef35f',sN1,sN1)
        e('v_mov_b32 v%d, s%d',vN,sN0); e('v_mov_b32 v%d, s%d',vN+1,sN1)
        e('s_getreg_b32 s%d, hwreg(HW_REG_XCC_ID, 0, 4)',sLOC)
        e('v_mov_b32 v28, s%d',sN0); e('v_mov_b32 v29, s%d',sN1); e('v_mov_b32 v30, s%d',sLOC)
        e('s_lshr_b32 s66, s2, 3'); e('s_lshl_b32 s67, s%d, 5',sX); e('s_add_u32 s66, s66, s67'); e('s_lshl_b32 s66, s66, 4'); e('s_add_u32 s66, s66, %d',WS_XC)
        e('s_cmp_eq_u32 s%d, 0',sW); e('s_cselect_b32 s66, s66, 0x%x',OOB)
        e('s_mov_b64 exec, 1'); self.wsst(R(28),vZ,66); e('s_mov_b64 exec, -1')
    def wdma(self,c):
        out=[]; slot=L_RING+(c%4)*16384
        for m in range(2):
            for h in range(2):
                v=[[8,9],[14,15]][m][h] if c<8 else [16,17][h]
                s=sWK+(c if c<8 else 2*(c-8)+m)
                def f0(m=m,h=h): self.m0(sW11,slot+m*8192+h*1024)
                def f1(v=v,s=s): self.tw[c]=self.dma(v,SW,s)
                out.append((f0,f1))
        return out
    def p0_issue(self):
        k=self.k; e=k.e
        e('s_lshl_b32 s60, s%d, 2',sHG); e('s_add_u32 s60, s60, s%d',sW)
        e('s_mul_i32 s61, s60, 96'); e('s_mul_i32 s62, s%d, %d',sTB,16*2752); e('s_add_u32 s61, s61, s62')
        e('s_cmp_lt_u32 s60, 29'); e('s_cselect_b32 s61, s61, 0x%x',OOB); e('s_add_u32 s62, s61, %d',8*2752)
        e('s_mul_i32 s63, s%d, 6144',sW)
        e('s_lshl_b32 s64, s2, 2'); e('s_add_u32 s64, s64, s%d',sW)
        e('s_lshr_b32 s65, s64, 3'); e('s_lshl_b32 s65, s65, 14'); e('s_and_b32 s66, s64, 7'); e('s_lshl_b32 s66, s66, 7'); e('s_add_u32 s65, s65, s66')
        e('s_cmp_lt_u32 s64, 688'); e('s_cselect_b32 s65, s65, 0x%x',OOB)
        e('s_lshl_b32 s52, s%d, 1',sTB); e('s_add_u32 s52, s52, s%d',sTT); e('s_lshl_b32 s53, s%d, 6',sHG); e('s_add_u32 s53, s53, s52'); e('s_lshl_b32 s53, s53, 10')
        e('s_lshr_b32 s67, s52, 5'); e('s_cmp_eq_u32 s67, s%d',sHP); e('s_cselect_b32 s53, s53, 0x%x',OOB)
        self.m0(63,L_P0); e('s_add_u32 s66, s65, 8192'); self.dma(12,SG,61,'nt')
        self.m0(63,L_P0+1024); self.twb=e('buffer_load_dwordx4 v[60:63], v%d, s[%d:%d], s53 offen',vL16,SWO,SWO+3); self.dma(12,SG,62,'nt')
        for (v,sr,so,l) in ((12,SU,61,2048),(12,SU,62,3072),(11,SD,65,4096),(11,SD,66,5120)):
            self.m0(63,L_P0+l); e('s_nop 0'); self.tp0=self.dma(v,sr,so,'nt')
    def p0_finish(self):
        k=self.k; e=k.e
        B=128
        e('v_xor_b32 v24, 32, v20'); e('v_xor_b32 v25, 64, v20'); e('v_xor_b32 v26, 64, v21')
        k.waitvm(self.tp0)
        for f in range(3):
            for t in range(2): e('ds_read_b64_tr_b16 %s, v%d offset:%d',R(B+4*f+2*t,2),[20,24,25][f],t*1024)
        for ct in range(2):
            for t in range(2): last=e('ds_read_b64_tr_b16 %s, v%d offset:%d',R(B+12+4*ct+2*t,2),26 if ct else 21,4096+t*1024)
        e('s_mul_i32 s61, s60, %d',3*32768); e('s_lshl_b32 s62, s%d, 10',sTB); e('s_add_u32 s61, s61, s62'); e('s_add_u32 s61, s61, %d',WS_WGU)
        e('s_cmp_lt_u32 s60, 29'); e('s_cselect_b32 s61, s61, 0x%x',OOB); e('s_add_u32 s62, s61, 32768'); e('s_add_u32 s63, s61, 65536')
        e('s_cmp_lt_u32 s60, 28'); e('s_cselect_b32 s63, s63, 0x%x',OOB)
        e('s_lshr_b32 s65, s64, 3'); e('s_and_b32 s66, s64, 7'); e('s_mul_i32 s66, s66, 172'); e('s_add_u32 s65, s65, s66'); e('s_lshl_b32 s65, s65, 10'); e('s_add_u32 s65, s65, %d',WS_WD)
        e('s_cmp_lt_u32 s64, 688'); e('s_cselect_b32 s65, s65, 0x%x',OOB); e('s_add_u32 s66, s65, %d',86*1024)
        e('v_dot2_f32_bf16 v45, v60, v22, 0'); e('v_dot2_f32_bf16 v46, v61, v22, 0'); e('v_dot2_f32_bf16 v45, v62, v22, v45'); e('v_dot2_f32_bf16 v46, v63, v22, v46')
        k.waitlg(last)
        for f in range(3): self.wsst(R(B+4*f),vL16,61+f)
        e('v_add_f32 v45, v45, v46')
        self.wsst(R(B+12),vL16,65); self.tp0st=self.wsst(R(B+16),vL16,66)
        for r in (8,4,2,1): e('v_add_f32_dpp v45, v45, v45 row_ror:%d row_mask:0xf bank_mask:0xf',r)
        e('v_mov_b32 v46, v45'); e('v_permlane16_swap_b32 v45, v46'); e('v_add_f32 v45, v45, v46')
        e('v_mov_b32 v46, v45'); e('v_permlane32_swap_b32 v45, v46'); e('v_add_f32 v45, v45, v46')
        e('v_mul_f32 v45, 0x%x, v45',f2u(1/512.))
    def ln(self,hooks):
        k=self.k; e=k.e
        for g in range(4):
            X=64+16*g; k.waitvm(self.tx[g])
            for j in range(16):
                s,q=(48+2*g,49+2*g) if j&1==0 else (24,25)
                if j<2:
                    e('v_dot2_f32_bf16 v%d, v%d, v22, 0',s,X+j); e('v_dot2_f32_bf16 v%d, v%d, v%d, 0',q,X+j,X+j)
                else:
                    e('v_dot2_f32_bf16 v%d, v%d, v22, v%d',s,X+j,s); e('v_dot2_f32_bf16 v%d, v%d, v%d, v%d',q,X+j,X+j,q)
            if g in hooks: hooks[g]()
            else: e('s_nop 1')
            e('v_pk_add_f32 %s, %s, v[24:25]',R(48+2*g,2),R(48+2*g,2))
        for r in (8,4,2,1):
            for j in range(8): e('v_add_f32_dpp v%d, v%d, v%d row_ror:%d row_mask:0xf bank_mask:0xf',48+j,48+j,48+j,r)
        e('v_mov_b32 v28, 0x%x',f2u(1/512.))
        for g in range(4): e('v_pk_mul_f32 %s, %s, v[28:29] op_sel_hi:[1,0]',R(48+2*g,2),R(48+2*g,2))
        S=[48,50,52,54]; Q=[49,51,53,55]
        for g in range(4): e('v_fma_f32 v%d, -v%d, v%d, v%d',Q[g],S[g],S[g],Q[g])
        for g in range(4):
            e('v_add_u32 v23, s%d, v43',56+g); e('ds_write_b32 v23, v%d',S[g])
        for g in range(4): e('v_max_f32 v%d, 0, v%d',Q[g],Q[g])
        for g in range(0,4,2): e('v_cvt_pk_bf16_f32 v%d, v%d, v%d',24+g//2,Q[g],Q[g+1])
        for g in range(0,4,2): e('v_lshlrev_b32 v%d, 16, v%d',Q[g],24+g//2); e('v_and_b32 v%d, s%d, v%d',Q[g+1],sMASK,24+g//2)
        for g in range(4): e('v_add_f32 v%d, 0x%x, v%d',Q[g],f2u(1e-5),Q[g])
        for g in range(0,4,2): e('v_cvt_pk_bf16_f32 v%d, v%d, v%d',24+g//2,Q[g],Q[g+1])
        for g in range(0,4,2): e('v_lshlrev_b32 v%d, 16, v%d',Q[g],24+g//2); e('v_and_b32 v%d, s%d, v%d',Q[g+1],sMASK,24+g//2)
        for g in range(4): e('v_sqrt_f32 v%d, v%d',Q[g],Q[g])
        for g in range(0,4,2): e('v_cvt_pk_bf16_f32 v%d, v%d, v%d',26+g//2,S[g],S[g+1])
        for g in range(0,4,2): e('v_cvt_pk_bf16_f32 v%d, v%d, v%d',24+g//2,Q[g],Q[g+1])
        for g in range(0,4,2): e('v_lshlrev_b32 v%d, 16, v%d',S[g],26+g//2); e('v_and_b32 v%d, s%d, v%d',S[g+1],sMASK,26+g//2)
        for g in range(0,4,2): e('v_lshlrev_b32 v%d, 16, v%d',Q[g],24+g//2); e('v_and_b32 v%d, s%d, v%d',Q[g+1],sMASK,24+g//2)
        for g in range(4): e('v_rcp_f32 v%d, v%d',Q[g],Q[g])
        e('s_nop 0')
        for g in range(4): e('v_mul_f32_e64 v%d, -v%d, v%d',S[g],S[g],Q[g])
        self.stamp('stats')
        for g in range(4):
            X=64+16*g
            for i in range(4):
                for j in range(4):
                    x=X+4*i+j; t=24+2*j
                    e('v_lshlrev_b32 v%d, 16, v%d',t,x); e('v_and_b32 v%d, s%d, v%d',t+1,sMASK,x)
                for j in range(4):
                    t=24+2*j
                    e('v_pk_fma_f32 %s, %s, %s, %s op_sel:[0,1,0] op_sel_hi:[1,1,0]',R(t,2),R(t,2),R(48+2*g,2),R(48+2*g,2))
                for j in range(4): e('v_cvt_pk_bf16_f32 v%d, v%d, v%d',X+4*i+j,24+2*j,25+2*j)
                e('ds_write_b128 v%d, %s offset:%d',7 if g==0 else 39+g,R(X+4*i),256*i)
            if 4+g in hooks: hooks[4+g]()
    def phi(self,src,n,dst,t):
        e=self.k.e
        e('v_mov_b32 v28, 0x%x',f2u(1.4426950408889634)); e('v_mov_b32 v30, 0x%x',f2u(1e-6))
        for j in range(0,n,2): e('v_pk_mul_f32 %s, %s, v[28:29] op_sel_hi:[1,0]',R(t+j,2),R(src+j,2))
        for j in range(n):
            e('v_exp_f32_e64 v%d, v%d clamp',t+j,t+j); e('v_max_f32 v%d, 0, v%d',src+j,src+j)
        for j in range(0,n,2): e('v_pk_add_f32 %s, %s, v[30:31] op_sel_hi:[1,0]',R(src+j,2),R(src+j,2))
        for j in range(0,n,2): e('v_pk_add_f32 %s, %s, %s',R(t+j,2),R(t+j,2),R(src+j,2))
        for j in range(0,n,2): e('v_cvt_pk_bf16_f32 v%d, v%d, v%d',dst+j//2,t+j,t+j+1)
    def p1(self):
        k=self.k; e=k.e; tw=self.tw
        def W(c):
            def f():
                for a,b in self.wdma(c): a(); e('s_nop 0'); b()
            return f
        def zf():
            k.waitvm(self.tzero)
            e('s_lshl_b32 s52, s%d, 1',sHG); e('s_add_u32 s52, s52, s%d',sTB); e('s_lshl_b32 s52, s52, 3'); e('s_add_u32 s52, s52, s%d',sW); e('s_lshl_b32 s52, s52, 3'); e('s_add_u32 s52, s52, %d',WS_ZF)
            e('s_cmp_lt_u32 s%d, 2',sTB); e('s_cselect_b32 s52, s52, 0x%x',OOB)
            e('s_mov_b64 exec, 1'); self.wsst(R(vN,2),vZ,52,w=2); e('s_mov_b64 exec, -1')
        def xk():
            for c in range(8):
                e('s_add_u32 s66, s%d, %d',sC0,c); e('s_and_b32 s66, s66, 7'); e('s_lshl_b32 s%d, s66, 7',sXK+c)
        if self.opt.get('nop0'):
            self.ln({0:W(1),1:W(2),2:lambda:(zf(),W(3)()), 4:xk})
            self.stamp('lndone'); self.tp0st=self.tzero
        else:
            pp=self.opt.get('p0at',0)
            hk={2:[zf],4:[xk],5:[W(1)],7:[W(2),W(3)]}
            hk.setdefault(pp,[]).append(self.p0_issue)
            if self.opt.get('w1at') is not None: hk[5]=[]; hk.setdefault(self.opt['w1at'],[]).append(W(1))
            self.ln({g:(lambda fs=fs:[f() for f in fs]) for g,fs in hk.items()})
            self.stamp('lndone')
            self.p0_finish()
        AK,AV,AQ=192,208,224
        WF=[32,24]
        k.waitvm(tw[0],k.lastlg()); e('s_barrier')
        self.stamp('kv0')
        e('v_lshrrev_b32 v46, 4, v%d',vL); e('v_and_b32 v47, 7, v%d',vL); e('v_xor_b32 v47, v47, v46'); e('v_lshrrev_b32 v46, 3, v%d',vL); e('v_lshlrev_b32 v46, 10, v46'); e('v_lshl_add_u32 v46, v47, 4, v46')
        e('v_xor_b32 v47, 64, v46')
        e('s_lshl_b32 s52, s%d, 7',sHG); e('s_add_u32 s52, s52, s54'); e('s_add_u32 s53, s52, 8192')
        pend=[(lambda:self.m0(sW11,L_XR),lambda:self.dma(46,SX,52)),(lambda:self.m0(sW11,L_XR+1024),lambda:setattr(self,'txr',self.dma(47,SX,53)))]
        def kreads(j):
            n=j>>1; c,s=n>>2,n&3; slot=(c%4)*16384; b=WF[n&1]+4*(j&1)
            if j&1==0:
                if s==0: e('v_add_u32 v23, s%d, v10',sXK+c)
                e('ds_read_b128 %s, v23 offset:%d',R(4*n,4,'a'),32*s)
            for t in range(2): last=e('ds_read_b64_tr_b16 %s, v18 offset:%d',R(b+2*t,2),slot+(j&1)*8192+s*2048+t*512)
            return last
        def kbar(j):
            if j%8==0 and j>0:
                c=j>>3
                k.waitvm(tw[c]); e('s_barrier')
                if c>=2: pend.extend(self.wdma(c+2))
        st={}
        def kmf(j):
            n=j>>1
            if j&1 and pend: st['p']=pend.pop(0); st['p'][0]()
            self.mfma(R(AV if j&1 else AK,16),R(4*n,4,'a'),R(WF[n&1]+4*(j&1)),'0' if n==0 else None)
            if st.get('p'): st.pop('p')[1]()
        def kfill(j):
            if j&1==0: return
            c,s=j>>3,(j>>1)&3
            if c==5 and s==0:
                e('s_lshl_b32 s52, s%d, 1',sHG); e('s_and_b32 s53, s%d, 1',sTB); e('s_add_u32 s52, s52, s53'); e('s_lshl_b32 s52, s52, 6'); e('s_add_u32 s60, s52, %d',WS_ZF)
                e('v_and_b32 v46, 3, v%d',vL); e('v_lshlrev_b32 v46, 3, v46')
                e('s_lshl_b32 s61, s%d, 9',sX); e('s_add_u32 s61, s61, %d',WS_XC); e('v_and_b32 v47, 0x1f0, v%d',vL16)
                self.wsld(R(60,2),46,60,w=2); self.tz=self.wsld(R(56),47,61)
            if c==6 and s==0:
                e('s_mul_i32 s52, s%d, 6144',sTT); e('s_mul_i32 s53, s%d, 3072',sHP); e('s_add_u32 s52, s52, s53'); e('s_add_u32 s52, s52, %d',L_P0)
                e('v_add_u32 v40, s52, v%d',vL16)
                e('v_bfe_u32 v41, v%d, 2, 1',vL); e('v_lshlrev_b32 v41, 5, v41'); e('v_and_b32 v42, 0x13, v%d',vL); e('v_add_u32 v41, v41, v42')
            if c==6 and s==1:
                e('v_bfe_u32 v42, v%d, 3, 1',vL); e('v_lshl_add_u32 v41, v42, 2, v41'); e('v_lshrrev_b32 v42, 5, v%d',vL); e('v_lshl_add_u32 v41, v42, 3, v41')
                e('v_lshlrev_b32 v41, 4, v41'); e('v_add_u32 v41, s52, v41')
                e('s_lshl_b32 s53, s%d, 1',sTB); e('s_add_u32 s53, s53, s%d',sTT); e('s_and_b32 s53, s53, 31'); e('s_add_u32 s53, s53, 32')
            if c==6 and s==2:
                e('v_cmp_eq_u32 s[62:63], s53, v%d',vL); e('v_cmp_gt_u32 s[64:65], 32, v%d',vL)
                e('s_mul_i32 s52, s%d, 1536',sW); e('s_add_u32 s53, s52, %d',L_P0); e('v_lshlrev_b32 v42, 2, v%d',vL); e('v_add_u32 v43, s53, v42')
                e('v_cndmask_b32 v45, 0, v45, s[62:63]')
            if c==6 and s==3:
                e('s_and_b32 s53, s%d, 1',sTB); e('s_mul_i32 s53, s53, %d',16*3072); e('s_mul_i32 s55, s%d, 6144',sHG); e('s_add_u32 s53, s53, s55'); e('s_add_u32 s53, s53, s52'); e('s_add_u32 s55, s53, %d',WS_KV)
            if c==7 and s==0:
                for i in range(4): e('v_mov_b32 v%d, v22',144+i)
                for g in range(3): e('v_mov_b32 v%d, 0.5',128+4*g+3)
                e('v_and_b32 v23, 16, v%d',vL) if False else None
        self.pipe(64,3,kreads,kmf,kbar,kfill)
        for a,b in pend: a(); e('s_nop 0'); b()
        self.stamp('kvdone')
        e('s_mov_b32 vcc_lo, 0xffff0000'); e('s_mov_b32 vcc_hi, 0xffff0000')
        PK,PV,TM=48,32,160
        for j in range(8): e('v_cvt_pk_bf16_f32 v%d, v%d, v%d',PV+j,AV+2*j,AV+2*j+1)
        self.phi(AK,16,PK,TM)
        KVA,ZA=160,176
        self.mfma(R(KVA,16),R(PK),R(PV),'0'); self.mfma(R(ZA,16),R(144),R(PK),'0')
        self.mfma(R(KVA,16),R(PK+4),R(PV+4)); self.mfma(R(ZA,16),R(144),R(PK+4))
        Lp=k.newlabel('zp'); Lo=k.newlabel('zo')
        k.waitvm(self.tz)
        e('s_mov_b32 s%d, 0',sSPIN)
        k.label(Lp)
        e('v_cmp_ne_u64 s[52:53], v[60:61], %s',R(vN,2)); e('v_cmp_ne_u64 s[62:63], v[56:57], %s',R(vN,2)); e('s_or_b64 s[52:53], s[52:53], s[62:63]')
        e('s_cbranch_scc0 %s',Lo)
        e('s_add_u32 s%d, s%d, 1',sSPIN,sSPIN); e('s_cmp_gt_u32 s%d, %d',sSPIN,SPIN); e('s_cbranch_scc1 L_end')
        sv=(list(k.vm),k.vmdone,dict(k.pend))
        self.wsld(R(60,2),46,60,w=2); self.wsld(R(56),47,61); e('s_waitcnt vmcnt(0)'); e('s_branch %s',Lp)
        k.vm,k.vmdone,k.pend=sv
        k.label(Lo)
        e('v_cmp_ne_u32 s[52:53], s%d, v58',sLOC); e('s_cmp_eq_u64 s[52:53], 0')
        if self.opt.get('forceglobal'): e('s_cmp_eq_u32 s2, 100000')
        e('s_cselect_b32 s%d, 1, 0',sLOC)
        e('s_cselect_b32 s52, 0, 0x%x',OOB); e('s_cselect_b32 s53, 0x%x, 0',OOB)
        e('v_mov_b32 v%d, 0x%x',vFP,OOB); e('v_mov_b32 v%d, 0x%x',vFG,OOB); e('v_writelane_b32 v%d, s52, 0',vFP); e('v_writelane_b32 v%d, s53, 0',vFG)
        S=128
        for j in range(8): e('v_cndmask_b32 v%d, v%d, v%d, vcc',S+4*(j//3)+j%3,KVA+j,KVA+8+j)
        e('v_cndmask_b32 v45, v45, v%d, s[64:65]',ZA)
        for g in range(3): e('ds_write_b128 v40, %s offset:%d',R(S+4*g),1024*g)
        e('ds_write_b32 v41, v45 offset:%d',2048+8)
        k.waitvm(self.txr,k.lastlg()); e('s_barrier')
        for i in range(6): last=e('ds_read2st64_b32 %s, v43 offset0:%d offset1:%d',R(S+2*i,2),i,i+24)
        for a,b in self.wdma(10)+self.wdma(11): a(); e('s_nop 0'); b()
        k.waitvm(self.tp0st,last)
        for i in range(6): e('v_add_f32 v%d, v%d, v%d',S+2*i,S+2*i,S+2*i+1)
        for i in range(6): e('buffer_atomic_add_f32 v%d, v42, s[%d:%d], s55 offen offset:%d',S+2*i,SWS,SWS+3,256*i)
        self.stamp('atom')
        XR=240
        for q in range(4):
            if q: e('v_xor_b32 v23, %d, v19',16*q)
            e('ds_read_b64 %s, v%d',R(XR+2*q,2),23 if q else 19)
        e('ds_read_b32 v248, v44')
        QB=[32,36,24,28]
        def qreads(j):
            c,s=8+(j>>3),j&7; slot=(c%4)*16384
            for t in range(2): last=e('ds_read_b64_tr_b16 %s, v18 offset:%d',R(QB[j&3]+2*t,2),slot+(s>>2)*8192+(s&3)*2048+t*512)
            return last
        def qbar(j):
            if j==0: k.waitvm(tw[9]); e('s_barrier')
            if j==16: k.waitvm(tw[11]); e('s_barrier')
        def qfill(n):
            if n==2:
                e('s_lshl_b32 s52, s%d, 1',sHG); e('s_add_u32 s52, s52, s%d',sHP); e('s_mul_i32 s52, s52, 3072'); e('s_add_u32 s52, s52, %d',WS_KV); e('s_add_u32 s53, s52, %d',16*3072)
            if n==4:
                e('s_lshl_b32 s60, s%d, 1',sTB); e('s_add_u32 s60, s60, s%d',sTT); e('s_mul_i32 s60, s60, %d',33*1024); e('s_add_u32 s60, s60, %d',WS_O)
            if n==6:
                e('s_lshl_b32 s61, s%d, 1',sHG); e('s_add_u32 s61, s61, s%d',sHP); e('s_lshl_b32 s62, s61, 11'); e('s_add_u32 s62, s62, s60')
            if n==8:
                e('s_lshl_b32 s63, s61, 6'); e('v_lshlrev_b32 v47, 1, v%d',vL)
            if n==10:
                e('s_add_u32 s63, s63, s60'); e('s_add_u32 s63, s63, 32768')
                e('s_lshl_b32 s64, s%d, 3',sTB); e('s_add_u32 s64, s64, s%d',sHG); e('s_lshl_b32 s64, s64, 3'); e('s_add_u32 s64, s64, %d',WS_F1)
            if n==12:
                e('s_lshl_b32 s56, s%d, 17',sW); e('s_lshl_b32 s57, s%d, 7',sHG); e('s_add_u32 s56, s56, s57'); e('v_add_u32 v11, s56, v11'); e('s_lshl_b32 s57, s%d, 14',sW)
            if n==14:
                e('s_lshl_b32 s58, s%d, 2',sQ)
        self.pipe(32,3,qreads,lambda j:self.mfma(R(AQ,16),R(QB[j&3]),R(4*j,4,'a'),'0' if j==0 else None),qbar,qfill)
        self.stamp('qdone')
        PQ=48
        self.phi(AQ,16,PQ,160)
        KL=128
        e('s_mov_b32 s%d, 0',sSPIN); e('v_mov_b32 v28, 0x%x',f2u(16.0))
        Lp=k.newlabel('kvp'); k.label(Lp)
        for r in range(2):
            for g in range(3): self.wsld(R(KL+12*r+4*g),vL16,52+r,off=1024*g)
        e('s_add_u32 s%d, s%d, 1',sSPIN,sSPIN); e('s_cmp_gt_u32 s%d, %d',sSPIN,SPIN); e('s_cbranch_scc1 L_end')
        e('s_waitcnt vmcnt(0)')
        for i in range(0,6,2): e('v_min_f32 v%d, v%d, v%d',KL+4*i+3,KL+4*i+3,KL+4*i+7)
        e('v_min3_f32 v%d, v%d, v%d, v%d',KL+3,KL+3,KL+11,KL+19)
        e('v_cmp_neq_f32 vcc, v%d, v28',KL+3)
        e('s_cbranch_vccnz %s',Lp)
        self.stamp('kvok')
        def wo(i):
            e('s_add_u32 s59, s58, %d',i); e('s_and_b32 s59, s59, 15'); e('s_lshl_b32 s65, s59, 10'); e('s_add_u32 m0, s65, s57'); e('s_lshl_b32 s59, s59, 13')
            self.two=self.dma(11,SWO,59)
        self.wo=wo
        for g in range(3):
            e('v_pk_add_f32 %s, %s, %s',R(KL+4*g,2),R(KL+4*g,2),R(KL+12+4*g,2)); e('v_add_f32 v%d, v%d, v%d',KL+4*g+2,KL+4*g+2,KL+12+4*g+2)
        ZB=160
        sel=[KL+4*(j//3)+j%3 for j in range(8)]
        AA,AB,WB=56,60,36
        for j in range(4): e('v_cvt_pk_bf16_f32 v%d, v%d, v%d',AA+j,sel[2*j],sel[2*j+1])
        for j in range(8): e('v_mov_b32_dpp v%d, v%d row_newbcast:%d row_mask:0xf bank_mask:0xf',ZB+j,KL+10,j)
        for j in range(4): e('v_cvt_pk_bf16_f32 v%d, v%d, v%d',AB+j,ZB+2*j,ZB+2*j+1)
        e('s_nop 0')
        for j in range(4): e('v_permlane16_swap_b32 v%d, v%d',AA+j,AB+j)
        e('s_nop 0')
        self.mfma(R(AK,16),R(AA),R(PQ),'0'); self.mfma(R(AV,16),R(AB),R(PQ+4),'0')
        for j in range(8): e('v_mov_b32_dpp v%d, v%d row_newbcast:%d row_mask:0xf bank_mask:0xf',ZB+j,KL+10,8+j)
        for j in range(4): e('v_cvt_pk_bf16_f32 v%d, v%d, v%d',WB+j,ZB+2*j,ZB+2*j+1)
        e('v_add_f32 v28, 0x%x, v%d',f2u(1e-6),AK+8); e('v_add_f32 v30, 0x%x, v%d',f2u(1e-6),AV+8); e('v_rcp_f32 v28, v28'); e('v_rcp_f32 v30, v30')
        for h,A in enumerate((AK,AV)):
            for j in range(0,8,2): e('v_pk_mul_f32 %s, %s, %s op_sel_hi:[1,0]',R(A+j,2),R(A+j,2),R(28+2*h,2))
            for j in range(4): e('v_cvt_pk_bf16_f32 v%d, v%d, v%d',PQ+4*h+j,A+2*j,A+2*j+1)
            self.wsst(R(PQ+4*h),vL16,62,off=1024*h)
            self.mfma(R(160+16*h,16),R(WB),R(PQ+4*h),'0')
        self.stamp('ost')
        wo(0); wo(1)
        e('v_add_f32 v28, v160, v184'); e('v_cvt_pk_bf16_f32 v28, v28, v28')
        e('s_mov_b64 exec, 0xffffffff'); tst=self.wsst('v28',47,63,w=0); e('s_mov_b64 exec, -1')
        for i in range(2,self.opt.get('nwo',6)): wo(i)
        self.stamp('woiss')
        k.waitvm(tst); self.stamp('oack'); e('s_barrier')
        e('s_cmp_eq_u32 s%d, 0',sW); e('s_cselect_b32 s64, s64, 0x%x',OOB)
        self.flag2(64)
        self.stamp('oflag')
    def poll_o(self):
        k=self.k; e=k.e
        e('v_and_b32 v17, 7, v%d',vL); e('v_lshlrev_b32 v17, 3, v17'); e('s_lshl_b32 s52, s%d, 6',sTB); e('s_add_u32 s52, s52, %d',WS_F1)
        self.poll(17,52,14)
    def epoch(self):
        k=self.k; e=k.e
        e('s_cmp_eq_u32 s2, 0'); e('s_cselect_b32 s52, %d, 0x%x',WS_EPOCH,OOB)
        e('s_mov_b64 exec, 1'); self.wsst(R(vN,2),vZ,52,w=2,flags=''); e('s_mov_b64 exec, -1')
    def wgu(self,i,half):
        k=self.k; e=k.e; slot=[131072,0,32768,65536,98304,131072][i]
        def f0():
            e('s_add_u32 s66, s%d, %d',self.sWG,i*32768+half*4096); self.m0(self.sW13,slot+half*4096)
        out=[]
        for q in range(4):
            def f(q=q):
                if q==0: f0(); e('s_nop 0') if False else None
                self.tg[i]=self.dma(vL16,SWS,66,'sc1',off=1024*q)
            out.append(f)
        return out
    def p2(self):
        k=self.k; e=k.e; o=self.opt
        for i in range(o.get('nwo',6),16): self.wo(i)
        self.sWG,self.sW13,sO,sT=84,85,86,87
        e('s_lshl_b32 s66, s%d, 1',sHG); e('s_and_b32 s67, s%d, 1',sQ); e('s_add_u32 s88, s66, s67')
        e('s_mul_i32 s84, s88, %d',6*32768); e('s_lshl_b32 s85, s%d, 13',sW); e('s_add_u32 s84, s84, s85'); e('s_add_u32 s84, s84, %d',WS_WGU)
        e('s_lshl_b32 s86, s%d, 1',sTB); e('s_add_u32 s87, s86, s%d',sTT)
        e('s_mul_i32 s86, s87, %d',33*1024); e('s_lshl_b32 s66, s%d, 12',sHP); e('s_add_u32 s86, s86, s66'); e('s_add_u32 s86, s86, %d',WS_O)
        e('s_lshl_b32 s89, s%d, 15',sTT); e('s_add_u32 s90, s89, s66')
        e('s_add_u32 s89, s89, %d',L_O); e('v_add_u32 v10, s89, v%d',vL16)
        e('v_bfe_u32 v14, v%d, 2, 2',vL); e('v_lshlrev_b32 v14, 6, v14'); e('v_and_b32 v15, 3, v%d',vL); e('v_lshl_add_u32 v14, v15, 3, v14')
        e('v_bfe_u32 v15, v%d, 4, 1',vL); e('v_lshl_add_u32 v14, v15, 5, v14'); e('v_lshrrev_b32 v15, 5, v%d',vL); e('v_lshl_add_u32 v14, v15, 9, v14'); e('v_add_u32 v12, s89, v14')
        self.tg={}
        self.poll_o()
        self.stamp('o_ok')
        to={}
        for c in range(4):
            e('s_add_u32 s52, s86, %d',c*8192); self.m0(90,L_O+c*8192)
            if c==0: e('s_nop 0')
            for q in range(4): to[c]=self.dma(vL16,SWS,52,'sc1',off=1024*q)
        self.epoch()
        pend=self.wgu(0,0)+self.wgu(0,1)
        ACC=192; PB=[24,32,128,136]
        def reads(j):
            b=PB[j&3]
            e('ds_read_b128 %s, v10 offset:%d',R(b+4),j*1024)
            for t in range(2): last=e('ds_read_b64_tr_b16 %s, v13 offset:%d',R(b+2*t,2),L_WO+j*2048+t*1024)
            return last
        st={}
        def bar(j):
            if j%8==0:
                k.waitvm(to[j>>3]); e('s_barrier')
                if j==0: self.stamp('o0')
                if j==16:
                    e('s_lshl_b32 s66, s%d, 12',sHP); e('s_sub_u32 s52, s86, s66'); e('s_add_u32 s52, s52, 32768'); e('s_mov_b32 m0, s89'); e('s_nop 0')
                    st['ext']=self.dma(vL16,SWS,52,'sc1')
        def fill(j):
            if pend and j>=14 and j%2==0: pend.pop(0)()
            if j==1:
                for i in range(4): e('v_mov_b32 v%d, v22',144+i)
            if j==3: e('s_lshl_b32 s60, s87, 5'); e('s_lshl_b32 s61, s%d, 1',sHG); e('s_add_u32 s61, s61, s%d',sHP)
            if j==5: e('s_lshl_b32 s62, s61, 1'); e('s_add_u32 s60, s60, s62'); e('s_lshl_b32 s60, s60, 10'); e('s_add_u32 s60, s60, %d',WS_H)
            if j==7: e('s_lshl_b32 s62, s87, 4'); e('s_add_u32 s62, s62, s61'); e('s_lshl_b32 s63, s62, 7'); e('s_add_u32 s63, s63, %d',WS_STAT)
            if j==9: e('s_lshl_b32 s62, s62, 3'); e('s_add_u32 s62, s62, %d',WS_F2); e('v_lshlrev_b32 v47, 2, v%d',vL)
            if 11<=j<27:
                r=j-11; x=240+r//2
                if r&1: e('v_and_b32 v%d, s%d, v%d',160+r,sMASK,x)
                else: e('v_lshlrev_b32 v%d, 16, v%d',160+r,x)
        self.pipe(32,3,reads,lambda j:self.mfma(R(ACC,16),R(PB[j&3]),R(PB[j&3]+4),'0' if j==0 else None),bar,fill)
        self.stamp('p2mm')
        k.waitvm(st['ext']); e('s_barrier')
        e('ds_read_b64_tr_b16 v[24:25], v12'); t=e('ds_read_b64_tr_b16 v[26:27], v12 offset:256')
        for f in self.wgu(1,0): f()
        k.waitlg(t)
        self.mfma(R(208,16),R(144),R(24),'0')
        for j in range(0,16,2): e('v_pk_add_f32 %s, %s, %s',R(ACC+j,2),R(ACC+j,2),R(160+j,2))
        for j in range(8): e('v_cvt_pk_bf16_f32 v%d, v%d, v%d',240+j,ACC+2*j,ACC+2*j+1)
        e('v_add_f32 v28, v248, v208')
        for j in range(0,16,2): e('v_pk_add_f32 %s, %s, v[28:29] op_sel_hi:[1,0] neg_lo:[0,1] neg_hi:[0,1]',R(ACC+j,2),R(ACC+j,2))
        for j in range(8): e('v_cvt_pk_bf16_f32 v%d, v%d, v%d',128+j,ACC+2*j,ACC+2*j+1)
        self.wsst(R(128),vL16,60); self.wsst(R(132),vL16,60,off=1024)
        for j in range(8):
            d=24+(j&1)
            e('v_dot2_f32_bf16 v%d, v%d, v%d, %s',d,128+j,128+j,'0' if j<2 else 'v%d'%d)
        e('v_add_f32 v24, v24, v25'); e('v_mov_b32 v25, v24'); e('v_permlane32_swap_b32 v24, v25'); e('v_add_f32 v24, v24, v25')
        e('s_mov_b64 exec, 0xffffffff'); tst=self.wsst('v24',47,63,w=1); e('s_mov_b64 exec, -1')
        self.stamp('hst')
        for f in self.wgu(1,1)+(self.wgu(2,0) if o.get('g2',1) else []): f()
        k.waitvm(tst)
        self.flag2(62)
        self.stamp('hflag')
    def p4_consts(self):
        k=self.k; e=k.e
        e('s_mul_i32 s92, s%d, 6',sW)
        e('s_lshl_b32 s93, s%d, 2',sW); e('s_cmp_eq_u32 s%d, 3',sW); e('s_cselect_b32 s66, 1, 0'); e('s_sub_u32 s93, s93, s66'); e('s_add_u32 s93, s93, 72')
        e('s_cmp_ge_u32 s%d, 2',sW); e('s_cselect_b32 s94, 2, 3'); e('s_add_u32 s94, s94, s93')
        e('s_mul_i32 s95, s%d, %d',sHG,172*1024); e('s_add_u32 s95, s95, %d',WS_WD)
        e('s_mul_i32 s96, s%d, %d',sTB,172*1024); e('s_add_u32 s96, s96, %d',WS_A)
        for r in (92,93,94): e('s_lshl_b32 s%d, s%d, 10',r,r)
    def fragloads(self,base,regs):
        k=self.k; e=k.e; out=[]; tok={}
        for j0,n,sr,add in [(0,4,92,0),(4,2,92,4),(6,4,92,24),(10,2,92,28),(12,4,92,48),(16,2,92,52),(18,3,93,0),(21,1,94,0)]:
            for c in range(2):
                for q in range(n):
                    def f(j=j0+q,q=q,c=c,sr=sr,add=add):
                        if q==0:
                            e('s_add_u32 s67, s%d, s%d',base,sr)
                            if add or c: e('s_add_u32 s67, s67, %d',(add+86*c)*1024)
                        tok[(j,c)]=self.wsld(regs(j,c),vL16,67,off=1024*q)
                    out.append(f)
        return out,tok
    @staticmethod
    def wreg(j,c):
        n=2*j+c; return R(128+4*n,4,'a') if n<32 else R(128+4*(n-32))
    @staticmethod
    def areg(j,c):
        n=2*j+c; return R(4*n,4,'a') if n<32 else R(64+4*(n-32))
    def gelu(self,A,dst):
        e=self.k.e; out=[]; T=32
        C1,C3,IR=20,21,19
        def op(fmt,*a): out.append(lambda:e(fmt,*a))
        for h in range(2):
            js=range(4*h,4*h+4)
            for j in js: op('v_mul_f32 v%d, v%d, v%d',T+j,A+j,A+j)
            for j in js: op('v_fma_f32 v%d, v%d, v%d, v%d',T+j,T+j,C3,C1)
            for j in js: op('v_mul_f32 v%d, v%d, v%d',T+j,T+j,A+j)
            for j in js: op('v_exp_f32 v%d, v%d',T+j,T+j); op('v_mul_f32 v%d, v%d, v%d',A+j,A+j,A+8+j)
            for j in js: op('v_fma_f32 v%d, v%d, v%d, v%d',T+j,T+j,IR,IR)
            for j in js: op('v_rcp_f32 v%d, v%d',T+j,T+j)
            for j in js: op('v_mul_f32 v%d, v%d, v%d',A+j,A+j,T+j)
            for j in (4*h,4*h+2): op('v_cvt_pk_bf16_f32 v%d, v%d, v%d',dst+j//2,A+j,A+j+1)
        return out
    def p3(self):
        k=self.k; e=k.e; o=self.opt
        self.p4_consts()
        e('s_lshr_b32 s66, s%d, 1',sQ); e('s_lshl_b32 s66, s66, 2'); e('s_lshl_b32 s67, s%d, 3',sX); e('s_add_u32 s66, s66, s67'); e('s_add_u32 s87, s66, s%d',sW)
        e('s_lshl_b32 s60, s87, 15'); e('s_add_u32 s60, s60, %d',WS_H)
        e('s_lshl_b32 s61, s87, 11'); e('s_add_u32 s61, s61, %d',WS_STAT)
        e('s_lshl_b32 s62, s87, 7'); e('s_add_u32 s62, s62, %d',WS_F2)
        e('s_mul_i32 s66, s88, 6'); e('s_mul_i32 s63, s87, 86'); e('s_add_u32 s63, s63, s66'); e('s_lshl_b32 s63, s63, 10'); e('s_add_u32 s63, s63, %d',WS_A); e('s_add_u32 s65, s63, 4096')
        e('s_mul_i32 s64, s87, 96'); e('s_add_u32 s64, s64, s66'); e('s_lshl_b32 s64, s64, 3'); e('s_add_u32 s64, s64, %d',WS_F3)
        e('v_and_b32 v17, 15, v%d',vL); e('v_lshlrev_b32 v17, 3, v17'); e('v_lshlrev_b32 v16, 2, v%d',vL)
        e('v_add_u32 v10, 65536, v%d',vL16); e('v_add_u32 v11, 131072, v%d',vL16)
        wl,self.twd=self.fragloads(95,self.wreg)
        Lskip=k.newlabel('p3skip'); Lshort=k.newlabel('p3short'); Ldone=k.newlabel('p3done')
        e('s_cmp_ge_u32 s88, 15'); e('s_cbranch_scc1 %s',Lskip)
        pend=[]
        if not o.get('g2',1): pend+=self.wgu(2,0)
        for f in self.wgu(2,1): f()
        tF01=self.tg[1]
        self.poll(17,62,14)
        self.stamp('h_ok')
        th={}
        hl=[]
        for s in range(32):
            def f(s=s):
                if s%4==0: e('s_add_u32 s52, s60, %d',s*1024)
                th[s]=self.wsld(R(4*s,4,'a'),vL16,52,off=1024*(s%4))
            hl.append(f)
        sl=[(lambda m=m: th.__setitem__(('s',m),self.wsld('v%d'%(40+m),16,61,off=256*m,w=1))) for m in range(8)]
        NH=o.get('nh0',10)
        for f in hl[:NH]: f()
        pend=hl[NH:]+sl+pend+self.wgu(3,0)+self.wgu(3,1)+self.wgu(4,0)+self.wgu(4,1)
        e('s_barrier')
        ACC=[192,208,224]; WB=[24,28,48,52]
        seq=[(f,s) for s in range(32) for f in range(2)]+[(f,s) for f in range(2,6) for s in range(32)]
        slotoff=[131072,0,32768,65536,98304,131072]
        def reads(j):
            f,s=seq[j]; off=slotoff[f]+s*1024
            v,off=(vL16,off) if off<65536 else ((10,off-65536) if off<131072 else (11,off-131072))
            return e('ds_read_b128 %s, v%d offset:%d',R(WB[j&3]),v,off)
        epi=[]; st={}; tst={}
        def stats():
            out=[]
            def op(fmt,*a): out.append(lambda:e(fmt,*a))
            out.append(lambda:k.waitvm(th[('s',7)]))
            for a,b in ((40,41),(42,43),(44,45),(46,47)): pass
            op('v_add_f32 v40, v40, v41'); op('v_add_f32 v42, v42, v43'); op('v_add_f32 v44, v44, v45'); op('v_add_f32 v46, v46, v47')
            op('v_add_f32 v40, v40, v42'); op('v_add_f32 v44, v44, v46'); op('v_add_f32 v40, v40, v44'); op('v_mov_b32 v41, v40')
            op('s_nop 0'); op('v_permlane32_swap_b32 v40, v41'); op('v_add_f32 v40, v40, v41'); op('v_mul_f32 v40, 0x%x, v40',f2u(1/512.))
            op('v_cvt_pk_bf16_f32 v41, v40, v40'); op('v_lshlrev_b32 v40, 16, v41'); op('v_add_f32 v40, 0x%x, v40',f2u(1e-5))
            op('v_cvt_pk_bf16_f32 v41, v40, v40'); op('v_lshlrev_b32 v40, 16, v41'); op('v_sqrt_f32 v40, v40'); op('s_nop 0')
            op('v_cvt_pk_bf16_f32 v41, v40, v40'); op('v_lshlrev_b32 v40, 16, v41'); op('v_rcp_f32 v41, v40'); op('v_mul_f32 v19, v40, v40')
            K0=-2*0.7978845608028654*1.4426950408889634
            op('v_mul_f32 v20, 0x%x, v41',f2u(K0)); op('v_mul_f32 v41, v41, v41'); op('v_mul_f32 v41, 0x%x, v41',f2u(0.044715)); op('v_mul_f32 v21, v20, v41')
            return out
        def unit_epi(u):
            D=56+4*(u&1)
            def store(): tst[u]=self.wsst(R(D),vL16,63 if u<4 else 65,off=1024*(u&3))
            return self.gelu(ACC[u%3],D)+[store]
        def flag(u):
            def f():
                k.waitvm(tst[u]); self.flag2(64,off=8*u)
            return f
        def bar(j):
            f,s=seq[j]
            if f>=2 and s==0:
                if f==2:
                    pass
                k.waitvm(self.tg[f]); e('s_barrier')
                if f==3: pend[0:0]=self.wgu(5,0)+self.wgu(5,1)
        def mf(j):
            f,s=seq[j]
            if f<2 and j%2==0: k.waitvm(th[s])
            self.mfma(R(ACC[f%3],16),R(WB[j&3]),R(4*s,4,'a'),'0' if s==0 else None)
        sst=stats()
        def fill(j):
            if j<64:
                if pend: pend.pop(0)()
                if j>=44:
                    for _ in range(2):
                        if sst: sst.pop(0)()
            else:
                jj=j-64
                if jj==0:
                    assert not sst
                    pend.extend(wl)
                    epi.extend(unit_epi(0)+unit_epi(1)+[flag(0)])
                if jj==33: epi.extend(unit_epi(2)+[flag(1)])
                if jj==65: epi.extend(unit_epi(3)+[flag(2)])
                if jj==97: epi.extend(unit_epi(4)+[flag(3)])
                if jj%2==1 and pend: pend.pop(0)()
                n=3 if (jj<96) else 3
                if jj in (0,32,64,96): n=0
                for _ in range(n):
                    if epi: epi.pop(0)()
        tok={}
        L=3; n=len(seq)
        for j in range(L): tok[j]=reads(j)
        for j in range(n):
            k.waitlg(tok[j]); mf(j)
            if j==63-L+1-1+0 and False: pass
            if j+L<n:
                if j+L==64:
                    e('s_cmp_eq_u32 s88, 14'); e('s_cbranch_scc1 %s',Lshort)
                    snap=(list(k.vm),k.vmdone,list(k.lg),k.lgdone,dict(k.pend),list(k.hist),list(pend),list(sst),dict(tok))
                bar(j+L); tok[j+L]=reads(j+L)
            fill(j)
            if j==63: self.stamp('pair')
        self.stamp('p3mm')
        while pend: pend.pop(0)()
        while epi: epi.pop(0)()
        for f in unit_epi(5): f()
        flag(4)(); self.stamp('a5st'); flag(5)()
        self.stamp('aflag')
        e('s_branch %s',Ldone)
        main=(list(k.vm),k.vmdone,list(k.lg),k.lgdone,dict(k.pend))
        k.label(Lshort)
        k.vm,k.vmdone,k.lg,k.lgdone,k.pend,k.hist,_,sst2,tok=snap
        for f in sst2: pass
        for j in range(64-L,64):
            if j>64-L: k.waitlg(tok[j]); mf(j)
        for f in sst2: f()
        for u in range(2):
            for f in unit_epi(u): f()
        e('s_waitcnt vmcnt(0)'); self.flag2(64,off=0); self.flag2(64,off=8)
        k.label(Lskip)
        wl2,_=self.fragloads(95,self.wreg)
        k.check=False
        for f in wl2: f()
        e('s_waitcnt vmcnt(0) lgkmcnt(0)')
        k.check=True
        k.label(Ldone)
        k.vm,k.vmdone,k.lg,k.lgdone,k.pend=main
    def p4(self):
        k=self.k; e=k.e; o=self.opt
        e('v_min_u32 v14, 43, v%d',vL); e('v_cmp_le_u32 vcc, 22, v14'); e('v_subrev_u32 v15, 22, v14'); e('v_cndmask_b32 v14, v14, v15, vcc')
        e('v_cndmask_b32 v16, 0, 1, vcc')
        e('v_mul_u32_u24 v15, 43, v14'); e('v_lshrrev_b32 v15, 8, v15')
        e('v_mul_u32_u24 v17, 18, v15'); e('v_add_u32 v17, v17, v14'); e('s_lshr_b32 s52, s92, 10'); e('v_add_u32 v17, s52, v17')
        e('s_lshr_b32 s52, s93, 10'); e('s_lshr_b32 s53, s94, 10'); e('v_subrev_u32 v15, 18, v14'); e('v_add_u32 v15, s52, v15'); e('v_min_u32 v15, s53, v15')
        e('v_cmp_le_u32 vcc, 18, v14'); e('v_cndmask_b32 v17, v17, v15, vcc')
        e('v_mul_u32_u24 v16, 96, v16'); e('v_add_u32 v17, v17, v16'); e('v_lshlrev_b32 v17, 3, v17')
        e('s_mul_i32 s52, s%d, %d',sTB,2*96*8); e('s_add_u32 s52, s52, %d',WS_F3)
        ACC=[192,208,224,176]
        for r in range(16):
            x=240+r//2
            if r&1: e('v_and_b32 v%d, s%d, v%d',24+r,sMASK,x)
            else: e('v_lshlrev_b32 v%d, 16, v%d',24+r,x)
        for t in range(4):
            e('s_cmp_eq_u32 s%d, %d',sW,t); e('s_cselect_b32 s53, -1, 0')
            for r in range(16): e('v_and_b32 v%d, s53, v%d',ACC[t]+r,24+r)
        e('v_and_b32 v14, 31, v%d',vL); e('v_mul_u32_u24 v14, 272, v14'); e('v_lshrrev_b32 v15, 5, v%d',vL); e('v_lshl_add_u32 v18, v15, 4, v14'); e('s_mul_i32 s53, s%d, 17408',sW); e('v_add_u32 v18, s53, v18')
        e('v_lshrrev_b32 v14, 3, v%d',vL); e('v_and_b32 v15, 7, v%d',vL); e('v_mul_u32_u24 v19, 272, v14'); e('v_lshl_add_u32 v19, v15, 5, v19'); e('s_mul_i32 s53, s%d, %d',sW,16*272); e('v_add_u32 v19, s53, v19')
        e('v_lshlrev_b32 v20, 10, v14'); e('v_lshl_add_u32 v20, v15, 4, v20')
        e('s_lshl_b32 s60, s%d, 2',sTB); e('s_add_u32 s60, s60, s%d',sW); e('s_lshl_b32 s60, s60, 14'); e('s_lshl_b32 s53, s%d, 7',sHG); e('s_add_u32 s60, s60, s53'); e('s_add_u32 s61, s60, 8192')
        self.poll(17,52,14)
        self.stamp('a_ok')
        al,ta=self.fragloads(96,self.areg)
        NA=o.get('na0',10)
        for f in al[:NA]: f()
        pend=al[NA:]
        Ls=k.newlabel('p4s')
        for j in range(22):
            if j==21:
                while pend: pend.pop(0)()
                e('s_cmp_ge_u32 s%d, 2',sW); e('s_cbranch_scc1 %s',Ls)
            for tt in range(2):
                while (j,tt) not in ta: pend.pop(0)()
                k.waitvm(ta[(j,tt)])
                for ct in range(2):
                    self.mfma(R(ACC[tt+2*ct],16),self.wreg(j,ct),self.areg(j,tt))
                    if pend and ct==0: pend.pop(0)()
        k.label(Ls)
        self.stamp('p4mm')
        for tt in range(2):
            for ct in range(2):
                for q in range(4): last=e('ds_write_b128 v18, %s offset:%d',R(ACC[tt+2*ct]+4*q),tt*32*272+ct*128+q*32)
        k.waitlg(last); e('s_barrier')
        for r in range(2):
            for p in range(4):
                for h in range(2): last=e('ds_read_b128 %s, v19 offset:%d',R(64+32*r+8*p+4*h),p*17408+r*8*272+h*16)
            self.tl=getattr(self,'tl',{}); self.tl[r]=last
        for r in range(2):
            k.waitlg(self.tl[r]); B=64+32*r
            for j in range(0,8,2):
                e('v_pk_add_f32 %s, %s, %s',R(B+j,2),R(B+j,2),R(B+8+j,2)); e('v_pk_add_f32 %s, %s, %s',R(B+16+j,2),R(B+16+j,2),R(B+24+j,2))
            for j in range(0,8,2): e('v_pk_add_f32 %s, %s, %s',R(B+j,2),R(B+j,2),R(B+16+j,2))
            for j in range(4): e('v_cvt_pk_bf16_f32 v%d, v%d, v%d',B+8+j,B+2*j,B+2*j+1)
            e('buffer_store_dwordx4 %s, v20, s[%d:%d], s%d offen',R(B+8),SO,SO+3,60+r)
def report(g,s):
    print('nops',g.k.nops,'lines',len(s.split('\n')))
    import collections
    c=collections.Counter()
    for n,p,t in g.k.noplog: c[(p.split()[0],t.split()[0])]+=n
    print(c.most_common(20))
if __name__=='__main__':
    stop=sys.argv[1] if len(sys.argv)>1 else None
    if stop=='all': stop=None
    g=G(stamps=True,stop=stop); s=g.build(); open('k_t.s','w').write(s); report(g,s)
    import harness, cdna_launch as CL
    harness.build('k_t.s'); print(CL.address_register_problem('k_t.co', KN))
```

```python
import sys, struct
from kasm import *
NAME='sequential_preLN__linear_attn_block__geglu_ffn__prompt'
KN=NAME+'_kernel'
def f2u(x): return struct.unpack('<I',struct.pack('<f',x))[0]
WS_EPOCH=0x0
WS_ZF   =0x1000
WS_F1   =0x2000
WS_F2   =0x3000
WS_XC   =0x6000
WS_F3   =0x8000
WS_KV   =0x40000
WS_STAT =0x80000
WS_O    =0x100000
WS_H    =0x340000
WS_A    =0x580000
WS_WGU  =0xB00000
WS_WD   =0xE00000
WS_STAMP=0x1000000
WS_SIZE =0x1100000
OOB=0x7F000000
XNP=1040
L_RING=66560
L_P0=L_RING+65536
L_XR=L_P0+12288
L_MEAN=L_P0+24576
L_WO=0
L_O=65536
L_W=[131072-0,0,32768,65536]
LDS=163840
L_W=[LDS-32768+0,0,32768,65536]
SPIN=400000
SX,SW,SWO,SG,SU,SD,SO,SWS=4,8,12,16,20,24,28,32
sW,sX,sLOC,sHG,sQ,sTB,sN0,sN1=36,37,38,39,40,41,42,43
sC0=44; sTT=45; sHP=46; sW11=47
sSPIN=68; sMASK=69
sWK=8*0+84
sXK=92
STAMP0=70
def srd(k,d,lo,nbytes):
    k.e('s_mov_b32 s%d, s%d',d,lo); k.e('s_and_b32 s%d, s%d, 0xffff',d+1,lo+1); k.e('s_mov_b32 s%d, 0x%x',d+2,nbytes); k.e('s_mov_b32 s%d, 0x00020000',d+3)
def R(b,n=4,p='v'): return '%s[%d:%d]'%(p,b,b+n-1)
vL,vL16,vZ,vN=1,2,3,4
vST=255
vFP,vFG=249,250
class G:
    def __init__(self, stamps=False, stop=None, opt=None):
        self.k=K(); self.stamps=stamps; self.stop=stop; self.nst=0; self.names=[]; self.opt=opt or {}; self.pst=[]
    def stamp(self,name):
        if self.opt.get('padat')==name:
            k=self.k; e=k.e
            k.label('L_pad2'); e('s_memrealtime s[72:73]'); e('s_waitcnt lgkmcnt(0)'); e('s_sub_u32 s72, s72, s70'); e('s_cmp_lt_u32 s72, 3000'); e('s_cbranch_scc1 L_pad2')
        if not self.stamps: return
        if self.opt.get('only') and name not in self.opt['only']: return
        k=self.k
        if len(self.pst)==7: self.flush_stamps()
        i=len(self.pst); k.e('s_memrealtime s[%d:%d]',STAMP0+2*i,STAMP0+2*i+1); self.pst.append(self.nst); self.nst+=1; self.names.append(name)
    def flush_stamps(self):
        k=self.k
        if not self.pst: return
        k.e('s_waitcnt lgkmcnt(0)')
        for i,n in enumerate(self.pst): k.e('v_writelane_b32 v%d, s%d, %d',vST,STAMP0+2*i,n)
        self.pst=[]
    def mfma(self,d,a,b,c=None):
        self.k.e('v_mfma_f32_32x32x16_bf16 %s, %s, %s, %s',d,a,b,c if c is not None else d)
    def m0(self,sr,imm):
        if sr is None: self.k.e('s_mov_b32 m0, %d',imm)
        else: self.k.e('s_add_u32 m0, s%d, %d',sr,imm)
    def dma(self,voff,srd_,soff,flags='',off=0):
        return self.k.e('buffer_load_dwordx4 v%d, s[%d:%d], s%d offen %s%s lds',voff,srd_,srd_+3,soff,('offset:%d '%off) if off else '',flags)
    def wsld(self,dst,voff,soff,off=0,w=4,flags='sc1'):
        return self.k.e('buffer_load_dword%s %s, v%d, s[%d:%d], s%d offen %s%s',{1:'',2:'x2',4:'x4'}[w],dst,voff,SWS,SWS+3,soff,('offset:%d '%off) if off else '',flags)
    def wsst(self,src,voff,soff,off=0,w=4,flags='sc1'):
        return self.k.e('buffer_store_%s %s, v%d, s[%d:%d], s%d offen %s%s',{0:'short',1:'dword',2:'dwordx2',4:'dwordx4'}[w],src,voff,SWS,SWS+3,soff,('offset:%d '%off) if off else '',flags)
    def poll(self,vaddr,sbase,vt):
        k=self.k; e=k.e
        e('s_mov_b32 s%d, 0',sSPIN)
        p=k.newlabel('poll'); k.label(p)
        self.wsld(R(vt,2),vaddr,sbase,w=2)
        e('s_add_u32 s%d, s%d, 1',sSPIN,sSPIN); e('s_cmp_gt_u32 s%d, %d',sSPIN,SPIN); e('s_cbranch_scc1 L_end')
        e('s_waitcnt vmcnt(0)')
        e('v_cmp_ne_u64 vcc, %s, %s',R(vt,2),R(vN,2))
        e('s_cbranch_vccnz %s',p)
    def flag(self,soff):
        k=self.k; e=k.e
        a=k.newlabel('fg'); b=k.newlabel('fe')
        e('s_mov_b64 exec, 1')
        e('s_cmp_eq_u32 s%d, 0',sLOC); e('s_cbranch_scc1 %s',a)
        self.wsst(R(vN,2),vZ,soff,w=2,flags='')
        e('s_branch %s',b)
        k.label(a); k.vm.pop()
        t=self.wsst(R(vN,2),vZ,soff,w=2)
        k.label(b)
        e('s_mov_b64 exec, -1')
        return t
    def pipe(self,n,L,reads,mf,bar=None,fill=None,wait_every=1):
        k=self.k; tok={}
        for j in range(min(L,n)):
            if bar: bar(j)
            tok[j]=reads(j)
        for j in range(n):
            if j%wait_every==0: k.waitlg(tok[min(n-1,j+wait_every-1)])
            mf(j)
            if j+L<n:
                if bar: bar(j+L)
                tok[j+L]=reads(j+L)
            if fill: fill(j)
    def flag2(self,soff,off=0):
        self.wsst(R(vN,2),vFP,soff,off=off,w=2,flags='')
        return self.wsst(R(vN,2),vFG,soff,off=off,w=2)
    def bfround(self,v,t):
        e=self.k.e
        e('v_cvt_pk_bf16_f32 v%d, v%d, v%d',t,v,v); e('v_lshlrev_b32 v%d, 16, v%d',v,t)
    def build(self):
        k=self.k; e=k.e
        k.raw('.text\n.globl %s\n.p2align 8\n.type %s,@function\n%s:'%(KN,KN,KN))
        self.stamp('start')
        if self.opt.get('padto') or self.opt.get('padat'): e('s_memrealtime s[70:71]')
        e('s_load_dwordx4 s[48:51], s[0:1], 0')
        e('s_load_dwordx2 s[64:65], s[0:1], 72')
        e('s_load_dwordx2 s[52:53], s[0:1], 16')
        e('s_load_dwordx4 s[56:59], s[0:1], 32')
        e('s_load_dwordx4 s[60:63], s[0:1], 48')
        e('s_cmp_ge_u32 s2, 256'); e('s_cbranch_scc1 L_end')
        e('v_lshrrev_b32 v6, 6, v0'); e('v_and_b32 v%d, 63, v0',vL); e('v_readfirstlane_b32 s%d, v6',sW)
        e('s_and_b32 s%d, s2, 7',sX); e('s_lshr_b32 s66, s2, 3')
        e('s_and_b32 s%d, s66, 7',sHG); e('s_lshr_b32 s%d, s66, 3',sQ)
        e('s_lshl_b32 s%d, s%d, 2',sTB,sX); e('s_add_u32 s%d, s%d, s%d',sTB,sTB,sQ)
        if self.opt.get('ipf',1):
            k.raw('    s_getpc_b64 s[100:101]\nL_pc:')
            e('s_lshl_b32 s66, s66, 2'); e('s_add_u32 s66, s66, s%d',sW); e('s_min_u32 s66, s66, (L_end-L_pc)/1024-1'); e('s_lshl_b32 s66, s66, 10')
            e('v_lshl_add_u32 v7, v%d, 4, s66',vL)
            e('global_load_dwordx4 v[252:255], v7, s[100:101]') if not self.stamps else e('global_load_dwordx4 v[244:247], v7, s[100:101]')
        self.p1_start()
        self.p1()
        if self.stop!='p1':
            self.p2()
            if self.stop!='p2':
                self.p3()
                if self.stop!='p3': self.p4()
        else:
            self.poll_o(); self.epoch()
        self.stamp('end')
        if self.stamps:
            self.flush_stamps()
            e('s_waitcnt vmcnt(0)')
            e('s_lshl_b32 s48, s2, 2'); e('s_add_u32 s48, s48, s%d',sW); e('s_lshl_b32 s48, s48, 7'); e('s_add_u32 s48, s48, %d',WS_STAMP)
            e('v_lshlrev_b32 v6, 2, v%d',vL); e('s_mov_b64 exec, 0xffffffff')
            self.wsst('v%d'%vST,6,48,w=1,flags='')
            if self.opt.get('dbg') is not None:
                e('s_load_dwordx2 s[52:53], s[0:1], 64'); e('s_waitcnt lgkmcnt(0)')
                srd(k,56,52,256)
                e('v_readlane_b32 s60, v%d, 0',vST); e('s_nop 1'); e('v_subrev_u32 v7, s60, v%d',vST)
                e('s_cmp_eq_u32 s2, %d',self.opt['dbg']); e('s_cselect_b32 s61, 0, 0x%x',OOB); e('s_cmp_eq_u32 s%d, 0',sW); e('s_cselect_b32 s61, s61, 0x%x',OOB)
                e('buffer_store_dword v7, v6, s[56:59], s61 offen')
        if self.opt.get('padto'):
            k.label('L_pad'); e('s_memrealtime s[72:73]'); e('s_waitcnt lgkmcnt(0)'); e('s_sub_u32 s72, s72, s70'); e('s_cmp_lt_u32 s72, %d',self.opt['padto']); e('s_cbranch_scc1 L_pad')
        k.label('L_end'); e('s_endpgm')
        hdr='; @launch grid=(256,1,1) block=(256,1,1) lds=%d\n.amdgcn_target "amdgcn-amd-amdhsa--gfx950"\n'%LDS
        desc='''.section .rodata,"a"
.p2align 6
.amdhsa_kernel %s
  .amdhsa_next_free_vgpr 512
  .amdhsa_next_free_sgpr 102
  .amdhsa_accum_offset 256
  .amdhsa_group_segment_fixed_size 0
  .amdhsa_kernarg_size 80
  .amdhsa_user_sgpr_count 2
  .amdhsa_user_sgpr_kernarg_segment_ptr 1
  .amdhsa_system_sgpr_workgroup_id_x 1
.end_amdhsa_kernel
'''%KN
        return hdr+k.text()+desc
    def p1_start(self):
        k=self.k; e=k.e
        self.tx={}; self.tw={}
        e('v_lshrrev_b32 v24, 4, v%d',vL); e('v_and_b32 v25, 15, v%d',vL); e('v_lshlrev_b32 v25, 4, v25')
        e('v_lshl_add_u32 v6, v24, 10, v25')
        e('s_lshl_b32 s54, s%d, 2',sTB); e('s_add_u32 s54, s54, s%d',sW); e('s_lshl_b32 s54, s54, 14')
        for g in range(4):
            e('s_add_u32 s66, s%d, %d',sHG,g); e('s_and_b32 s%d, s66, 3',sXK+4+g)
        e('s_lshl_b32 s66, s%d, 12',sXK+4); e('s_add_u32 s55, s54, s66')
        e('v_and_b32 v26, 1, v24'); e('v_lshlrev_b32 v26, 2, v26'); e('v_and_b32 v27, 7, v%d',vL); e('v_xor_b32 v27, v27, v26'); e('v_lshlrev_b32 v27, 4, v27')
        e('v_lshrrev_b32 v26, 3, v%d',vL)
        e('v_mul_u32_u24 v16, 3072, v26'); e('v_add_u32 v16, v16, v27')
        e('s_mul_i32 s66, s%d, %d',sW,16*3072); e('s_lshl_b32 s67, s%d, 7',sHG); e('s_add_u32 s66, s66, s67')
        e('v_add_u32 v16, s66, v16')
        e('s_lshl_b32 s%d, s%d, 1',sC0,sQ); e('s_and_b32 s66, s%d, 1',sX); e('s_add_u32 s%d, s%d, s66',sC0,sC0)
        e('s_mul_i32 s%d, s%d, %d',sWK,sC0,64*3072)
        e('s_lshl_b32 s%d, s%d, 11',sW11,sW)
        e('v_add_u32 v8, 1024, v16'); e('v_add_u32 v9, %d, v16',1024+8*3072); e('v_add_u32 v14, 2048, v16'); e('v_add_u32 v15, %d, v16',2048+8*3072)
        e('s_waitcnt lgkmcnt(0)')
        e('s_load_dwordx2 s[%d:%d], s[64:65], %d',sN0,sN1,WS_EPOCH)
        srd(k,SX,48,2048*1024)
        for i in range(4): self.tx[0]=e('buffer_load_dwordx4 %s, v6, s[%d:%d], s55 offen offset:%d',R(64+4*i),SX,SX+3,256*i)
        srd(k,SW,50,512*3072)
        for f in self.wdma(0): f[0](); e('s_nop 0'); f[1]()
        for g in (1,2,3):
            e('s_lshl_b32 s66, s%d, 12',sXK+4+g); e('s_add_u32 s55, s54, s66')
            for i in range(4): self.tx[g]=e('buffer_load_dwordx4 %s, v6, s[%d:%d], s55 offen offset:%d',R(64+16*g+4*i),SX,SX+3,256*i)
            if g==1: self.consts()
        self.stamp('issued')
    def consts(self):
        k=self.k; e=k.e
        srd(k,SWS,64,WS_SIZE); srd(k,SWO,52,512*1024); srd(k,SG,56,512*2752); srd(k,SU,58,512*2752); srd(k,SD,60,1376*1024); srd(k,SO,62,2048*1024)
        e('v_lshlrev_b32 v%d, 4, v%d',vL16,vL); e('v_mov_b32 v%d, 0',vZ)
        e('s_and_b32 s%d, s%d, 1',sTT,sW); e('s_lshr_b32 s%d, s%d, 1',sHP,sW)
        e('s_mov_b32 s%d, 0xffff0000',sMASK)
        e('v_add_u32 v17, %d, v16',8*3072)
        e('v_lshl_add_u32 v11, v26, 10, v27')
        e('v_mul_u32_u24 v12, 2752, v26'); e('v_add_u32 v12, v12, v27')
        if self.opt.get('tlb'):
            e('v_min_u32 v28, 16, v%d',vL); e('v_lshlrev_b32 v28, 20, v28')
            e('buffer_load_dword v251, v28, s[%d:%d], 0 offen offset:64',SWS,SWS+3)
            e('v_and_b32 v28, 1, v%d',vL); e('v_lshlrev_b32 v28, 20, v28')
            e('buffer_load_dword v251, v28, s[%d:%d], 0 offen',SO,SO+3)
        e('s_mul_i32 s66, s%d, %d',sTB,16*3072); e('s_mul_i32 s67, s%d, 6144',sHG); e('s_add_u32 s66, s66, s67'); e('s_mul_i32 s67, s%d, 1536',sW); e('s_add_u32 s66, s66, s67'); e('s_add_u32 s66, s66, %d',WS_KV)
        e('s_cmp_lt_u32 s%d, 2',sTB); e('s_cselect_b32 s66, s66, 0x%x',OOB)
        for i in range(28,32): e('v_mov_b32 v%d, 0',i)
        e('v_lshlrev_b32 v23, 3, v%d',vL)
        self.wsst(R(28),vL16,66); self.tzero=self.wsst(R(28,2),23,66,off=1024,w=2)
        e('v_mul_u32_u24 v7, %d, v24',XNP); e('v_add_u32 v7, v7, v25')
        e('s_mul_i32 s67, s%d, %d',sW,16*XNP); e('v_add_u32 v7, s67, v7')
        for g in (1,2,3,0):
            e('s_mul_i32 s66, s%d, %d',sXK+4+g,4*XNP); e('v_add_u32 v%d, s66, v7',7 if g==0 else 39+g)
        e('s_lshl_b32 s66, s%d, 6',sW); e('s_add_u32 s66, s66, %d',L_MEAN); e('v_lshl_add_u32 v43, v24, 2, s66')
        for g in range(4): e('s_lshl_b32 s%d, s%d, 4',56+g,sXK+4+g)
        for c in range(1,8):
            e('s_add_u32 s66, s%d, %d',sC0,c); e('s_and_b32 s66, s66, 7'); e('s_mul_i32 s%d, s66, %d',sWK+c,64*3072)
        e('v_bfe_u32 v24, v%d, 2, 2',vL); e('v_bfe_u32 v25, v%d, 1, 1',vL); e('v_bfe_u32 v26, v%d, 4, 1',vL)
        e('v_lshl_add_u32 v25, v26, 1, v25')
        e('v_bfe_u32 v26, v%d, 3, 1',vL); e('v_lshlrev_b32 v26, 2, v26')
        e('v_lshlrev_b32 v24, 7, v24'); e('v_and_b32 v27, 1, v%d',vL); e('v_lshl_add_u32 v24, v27, 3, v24')
        e('v_lshrrev_b32 v27, 5, v%d',vL)
        e('s_lshl_b32 s66, s%d, 2',sHP)
        e('v_add_u32 v28, s66, v25'); e('v_xor_b32 v28, v28, v26'); e('v_lshl_add_u32 v28, v28, 4, v24')
        e('v_lshl_add_u32 v18, v27, 10, v28'); e('v_add_u32 v18, %d, v18',L_RING)
        e('v_lshl_add_u32 v13, v27, 9, v28')
        e('v_bfe_u32 v29, v%d, 1, 1',vL); e('v_xor_b32 v29, v29, v26'); e('v_lshl_add_u32 v29, v29, 4, v24'); e('v_lshl_add_u32 v29, v27, 9, v29')
        e('v_bfe_u32 v20, v%d, 4, 1',vL); e('v_lshl_add_u32 v20, v20, 11, v29')
        e('v_xor_b32 v21, v25, v26'); e('v_lshl_add_u32 v21, v21, 4, v24'); e('v_lshl_add_u32 v21, v27, 9, v21')
        e('s_mul_i32 s66, s%d, 6144',sW); e('s_add_u32 s66, s66, %d',L_P0)
        e('v_add_u32 v20, s66, v20'); e('v_add_u32 v21, s66, v21')
        e('v_and_b32 v28, 31, v%d',vL); e('s_lshl_b32 s66, s%d, 5',sTT); e('v_add_u32 v28, s66, v28')
        e('v_mul_u32_u24 v10, %d, v28',XNP); e('v_lshl_add_u32 v10, v27, 4, v10')
        e('v_bfe_u32 v29, v28, 1, 3'); e('s_lshl_b32 s66, s%d, 2',sHP); e('v_xor_b32 v29, s66, v29'); e('v_lshlrev_b32 v29, 4, v29')
        e('v_lshl_add_u32 v19, v28, 7, v29'); e('v_lshl_add_u32 v19, v27, 3, v19'); e('v_add_u32 v19, %d, v19',L_XR)
        e('v_lshl_add_u32 v44, v28, 2, 0'); e('v_add_u32 v44, %d, v44',L_MEAN)
        e('v_mov_b32 v22, 0x3f803f80')
        e('s_waitcnt lgkmcnt(0)')
        e('s_mul_i32 s%d, s%d, 1664525',sN0,sN0); e('s_add_u32 s%d, s%d, 1013904223',sN0,sN0)
        e('s_mul_i32 s%d, s%d, 22695477',sN1,sN1); e('s_add_u32 s%d, s%d, 0x3c6ef35f',sN1,sN1)
        e('v_mov_b32 v%d, s%d',vN,sN0); e('v_mov_b32 v%d, s%d',vN+1,sN1)
        e('s_getreg_b32 s%d, hwreg(HW_REG_XCC_ID, 0, 4)',sLOC)
        e('v_mov_b32 v28, s%d',sN0); e('v_mov_b32 v29, s%d',sN1); e('v_mov_b32 v30, s%d',sLOC)
        e('s_lshr_b32 s66, s2, 3'); e('s_lshl_b32 s67, s%d, 5',sX); e('s_add_u32 s66, s66, s67'); e('s_lshl_b32 s66, s66, 4'); e('s_add_u32 s66, s66, %d',WS_XC)
        e('s_cmp_eq_u32 s%d, 0',sW); e('s_cselect_b32 s66, s66, 0x%x',OOB)
        e('s_mov_b64 exec, 1'); self.wsst(R(28),vZ,66); e('s_mov_b64 exec, -1')
    def wdma(self,c):
        out=[]; slot=L_RING+(c%4)*16384
        for m in range(2):
            for h in range(2):
                v=[[8,9],[14,15]][m][h] if c<8 else [16,17][h]
                s=sWK+(c if c<8 else 2*(c-8)+m)
                def f0(m=m,h=h): self.m0(sW11,slot+m*8192+h*1024)
                def f1(v=v,s=s): self.tw[c]=self.dma(v,SW,s)
                out.append((f0,f1))
        return out
    def p0_issue(self):
        k=self.k; e=k.e
        e('s_lshl_b32 s60, s%d, 2',sHG); e('s_add_u32 s60, s60, s%d',sW)
        e('s_mul_i32 s61, s60, 96'); e('s_mul_i32 s62, s%d, %d',sTB,16*2752); e('s_add_u32 s61, s61, s62')
        e('s_cmp_lt_u32 s60, 29'); e('s_cselect_b32 s61, s61, 0x%x',OOB); e('s_add_u32 s62, s61, %d',8*2752)
        e('s_mul_i32 s63, s%d, 6144',sW)
        e('s_lshl_b32 s64, s2, 2'); e('s_add_u32 s64, s64, s%d',sW)
        e('s_lshr_b32 s65, s64, 3'); e('s_lshl_b32 s65, s65, 14'); e('s_and_b32 s66, s64, 7'); e('s_lshl_b32 s66, s66, 7'); e('s_add_u32 s65, s65, s66')
        e('s_cmp_lt_u32 s64, 688'); e('s_cselect_b32 s65, s65, 0x%x',OOB)
        e('s_lshl_b32 s52, s%d, 1',sTB); e('s_add_u32 s52, s52, s%d',sTT); e('s_lshl_b32 s53, s%d, 6',sHG); e('s_add_u32 s53, s53, s52'); e('s_lshl_b32 s53, s53, 10')
        e('s_lshr_b32 s67, s52, 5'); e('s_cmp_eq_u32 s67, s%d',sHP); e('s_cselect_b32 s53, s53, 0x%x',OOB)
        self.m0(63,L_P0); e('s_add_u32 s66, s65, 8192'); self.dma(12,SG,61,'nt')
        self.m0(63,L_P0+1024); self.twb=e('buffer_load_dwordx4 v[60:63], v%d, s[%d:%d], s53 offen',vL16,SWO,SWO+3); self.dma(12,SG,62,'nt')
        for (v,sr,so,l) in ((12,SU,61,2048),(12,SU,62,3072),(11,SD,65,4096),(11,SD,66,5120)):
            self.m0(63,L_P0+l); e('s_nop 0'); self.tp0=self.dma(v,sr,so,'nt')
    def p0_finish(self):
        k=self.k; e=k.e
        B=128
        e('v_xor_b32 v24, 32, v20'); e('v_xor_b32 v25, 64, v20'); e('v_xor_b32 v26, 64, v21')
        k.waitvm(self.tp0)
        for f in range(3):
            for t in range(2): e('ds_read_b64_tr_b16 %s, v%d offset:%d',R(B+4*f+2*t,2),[20,24,25][f],t*1024)
        for ct in range(2):
            for t in range(2): last=e('ds_read_b64_tr_b16 %s, v%d offset:%d',R(B+12+4*ct+2*t,2),26 if ct else 21,4096+t*1024)
        e('s_mul_i32 s61, s60, %d',3*32768); e('s_lshl_b32 s62, s%d, 10',sTB); e('s_add_u32 s61, s61, s62'); e('s_add_u32 s61, s61, %d',WS_WGU)
        e('s_cmp_lt_u32 s60, 29'); e('s_cselect_b32 s61, s61, 0x%x',OOB); e('s_add_u32 s62, s61, 32768'); e('s_add_u32 s63, s61, 65536')
        e('s_cmp_lt_u32 s60, 28'); e('s_cselect_b32 s63, s63, 0x%x',OOB)
        e('s_lshr_b32 s65, s64, 3'); e('s_and_b32 s66, s64, 7'); e('s_mul_i32 s66, s66, 172'); e('s_add_u32 s65, s65, s66'); e('s_lshl_b32 s65, s65, 10'); e('s_add_u32 s65, s65, %d',WS_WD)
        e('s_cmp_lt_u32 s64, 688'); e('s_cselect_b32 s65, s65, 0x%x',OOB); e('s_add_u32 s66, s65, %d',86*1024)
        e('v_dot2_f32_bf16 v45, v60, v22, 0'); e('v_dot2_f32_bf16 v46, v61, v22, 0'); e('v_dot2_f32_bf16 v45, v62, v22, v45'); e('v_dot2_f32_bf16 v46, v63, v22, v46')
        k.waitlg(last)
        for f in range(3): self.wsst(R(B+4*f),vL16,61+f)
        e('v_add_f32 v45, v45, v46')
        self.wsst(R(B+12),vL16,65); self.tp0st=self.wsst(R(B+16),vL16,66)
        for r in (8,4,2,1): e('v_add_f32_dpp v45, v45, v45 row_ror:%d row_mask:0xf bank_mask:0xf',r)
        e('v_mov_b32 v46, v45'); e('v_permlane16_swap_b32 v45, v46'); e('v_add_f32 v45, v45, v46')
        e('v_mov_b32 v46, v45'); e('v_permlane32_swap_b32 v45, v46'); e('v_add_f32 v45, v45, v46')
        e('v_mul_f32 v45, 0x%x, v45',f2u(1/512.))
    def ln(self,hooks):
        k=self.k; e=k.e
        for g in range(4):
            X=64+16*g; k.waitvm(self.tx[g])
            for j in range(16):
                s,q=(48+2*g,49+2*g) if j&1==0 else (24,25)
                if j<2:
                    e('v_dot2_f32_bf16 v%d, v%d, v22, 0',s,X+j); e('v_dot2_f32_bf16 v%d, v%d, v%d, 0',q,X+j,X+j)
                else:
                    e('v_dot2_f32_bf16 v%d, v%d, v22, v%d',s,X+j,s); e('v_dot2_f32_bf16 v%d, v%d, v%d, v%d',q,X+j,X+j,q)
            if g in hooks: hooks[g]()
            else: e('s_nop 1')
            e('v_pk_add_f32 %s, %s, v[24:25]',R(48+2*g,2),R(48+2*g,2))
        for r in (8,4,2,1):
            for j in range(8): e('v_add_f32_dpp v%d, v%d, v%d row_ror:%d row_mask:0xf bank_mask:0xf',48+j,48+j,48+j,r)
        e('v_mov_b32 v28, 0x%x',f2u(1/512.))
        for g in range(4): e('v_pk_mul_f32 %s, %s, v[28:29] op_sel_hi:[1,0]',R(48+2*g,2),R(48+2*g,2))
        S=[48,50,52,54]; Q=[49,51,53,55]
        for g in range(4): e('v_fma_f32 v%d, -v%d, v%d, v%d',Q[g],S[g],S[g],Q[g])
        for g in range(4):
            e('v_add_u32 v23, s%d, v43',56+g); e('ds_write_b32 v23, v%d',S[g])
        for g in range(4): e('v_max_f32 v%d, 0, v%d',Q[g],Q[g])
        for g in range(0,4,2): e('v_cvt_pk_bf16_f32 v%d, v%d, v%d',24+g//2,Q[g],Q[g+1])
        for g in range(0,4,2): e('v_lshlrev_b32 v%d, 16, v%d',Q[g],24+g//2); e('v_and_b32 v%d, s%d, v%d',Q[g+1],sMASK,24+g//2)
        for g in range(4): e('v_add_f32 v%d, 0x%x, v%d',Q[g],f2u(1e-5),Q[g])
        for g in range(0,4,2): e('v_cvt_pk_bf16_f32 v%d, v%d, v%d',24+g//2,Q[g],Q[g+1])
        for g in range(0,4,2): e('v_lshlrev_b32 v%d, 16, v%d',Q[g],24+g//2); e('v_and_b32 v%d, s%d, v%d',Q[g+1],sMASK,24+g//2)
        for g in range(4): e('v_sqrt_f32 v%d, v%d',Q[g],Q[g])
        for g in range(0,4,2): e('v_cvt_pk_bf16_f32 v%d, v%d, v%d',26+g//2,S[g],S[g+1])
        for g in range(0,4,2): e('v_cvt_pk_bf16_f32 v%d, v%d, v%d',24+g//2,Q[g],Q[g+1])
        for g in range(0,4,2): e('v_lshlrev_b32 v%d, 16, v%d',S[g],26+g//2); e('v_and_b32 v%d, s%d, v%d',S[g+1],sMASK,26+g//2)
        for g in range(0,4,2): e('v_lshlrev_b32 v%d, 16, v%d',Q[g],24+g//2); e('v_and_b32 v%d, s%d, v%d',Q[g+1],sMASK,24+g//2)
        for g in range(4): e('v_rcp_f32 v%d, v%d',Q[g],Q[g])
        e('s_nop 0')
        for g in range(4): e('v_mul_f32_e64 v%d, -v%d, v%d',S[g],S[g],Q[g])
        self.stamp('stats')
        for g in range(4):
            X=64+16*g
            for i in range(4):
                for j in range(4):
                    x=X+4*i+j; t=24+2*j
                    e('v_lshlrev_b32 v%d, 16, v%d',t,x); e('v_and_b32 v%d, s%d, v%d',t+1,sMASK,x)
                for j in range(4):
                    t=24+2*j
                    e('v_pk_fma_f32 %s, %s, %s, %s op_sel:[0,1,0] op_sel_hi:[1,1,0]',R(t,2),R(t,2),R(48+2*g,2),R(48+2*g,2))
                for j in range(4): e('v_cvt_pk_bf16_f32 v%d, v%d, v%d',X+4*i+j,24+2*j,25+2*j)
                e('ds_write_b128 v%d, %s offset:%d',7 if g==0 else 39+g,R(X+4*i),256*i)
            if 4+g in hooks: hooks[4+g]()
    def phi(self,src,n,dst,t):
        e=self.k.e
        e('v_mov_b32 v28, 0x%x',f2u(1.4426950408889634)); e('v_mov_b32 v30, 0x%x',f2u(1e-6))
        for j in range(0,n,2): e('v_pk_mul_f32 %s, %s, v[28:29] op_sel_hi:[1,0]',R(t+j,2),R(src+j,2))
        for j in range(n):
            e('v_exp_f32_e64 v%d, v%d clamp',t+j,t+j); e('v_max_f32 v%d, 0, v%d',src+j,src+j)
        for j in range(0,n,2): e('v_pk_add_f32 %s, %s, v[30:31] op_sel_hi:[1,0]',R(src+j,2),R(src+j,2))
        for j in range(0,n,2): e('v_pk_add_f32 %s, %s, %s',R(t+j,2),R(t+j,2),R(src+j,2))
        for j in range(0,n,2): e('v_cvt_pk_bf16_f32 v%d, v%d, v%d',dst+j//2,t+j,t+j+1)
    def p1(self):
        k=self.k; e=k.e; tw=self.tw
        def W(c):
            def f():
                for a,b in self.wdma(c): a(); e('s_nop 0'); b()
            return f
        def zf():
            k.waitvm(self.tzero)
            e('s_lshl_b32 s52, s%d, 1',sHG); e('s_add_u32 s52, s52, s%d',sTB); e('s_lshl_b32 s52, s52, 3'); e('s_add_u32 s52, s52, s%d',sW); e('s_lshl_b32 s52, s52, 3'); e('s_add_u32 s52, s52, %d',WS_ZF)
            e('s_cmp_lt_u32 s%d, 2',sTB); e('s_cselect_b32 s52, s52, 0x%x',OOB)
            e('s_mov_b64 exec, 1'); self.wsst(R(vN,2),vZ,52,w=2); e('s_mov_b64 exec, -1')
        def xk():
            for c in range(8):
                e('s_add_u32 s66, s%d, %d',sC0,c); e('s_and_b32 s66, s66, 7'); e('s_lshl_b32 s%d, s66, 7',sXK+c)
        if self.opt.get('nop0'):
            self.ln({0:W(1),1:W(2),2:lambda:(zf(),W(3)()), 4:xk})
            self.stamp('lndone'); self.tp0st=self.tzero
        else:
            pp=self.opt.get('p0at',0)
            hk={2:[zf],4:[xk],5:[W(1)],7:[W(2),W(3)]}
            hk.setdefault(pp,[]).append(self.p0_issue)
            if self.opt.get('w1at') is not None: hk[5]=[]; hk.setdefault(self.opt['w1at'],[]).append(W(1))
            self.ln({g:(lambda fs=fs:[f() for f in fs]) for g,fs in hk.items()})
            self.stamp('lndone')
            self.p0_finish()
        AK,AV,AQ=192,208,224
        WF=[32,24]
        k.waitvm(tw[0],k.lastlg()); e('s_barrier')
        self.stamp('kv0')
        e('v_lshrrev_b32 v46, 4, v%d',vL); e('v_and_b32 v47, 7, v%d',vL); e('v_xor_b32 v47, v47, v46'); e('v_lshrrev_b32 v46, 3, v%d',vL); e('v_lshlrev_b32 v46, 10, v46'); e('v_lshl_add_u32 v46, v47, 4, v46')
        e('v_xor_b32 v47, 64, v46')
        e('s_lshl_b32 s52, s%d, 7',sHG); e('s_add_u32 s52, s52, s54'); e('s_add_u32 s53, s52, 8192')
        pend=[(lambda:self.m0(sW11,L_XR),lambda:self.dma(46,SX,52)),(lambda:self.m0(sW11,L_XR+1024),lambda:setattr(self,'txr',self.dma(47,SX,53)))]
        def kreads(j):
            n=j>>1; c,s=n>>2,n&3; slot=(c%4)*16384; b=WF[n&1]+4*(j&1)
            if j&1==0:
                if s==0: e('v_add_u32 v23, s%d, v10',sXK+c)
                e('ds_read_b128 %s, v23 offset:%d',R(4*n,4,'a'),32*s)
            for t in range(2): last=e('ds_read_b64_tr_b16 %s, v18 offset:%d',R(b+2*t,2),slot+(j&1)*8192+s*2048+t*512)
            return last
        def kbar(j):
            if j%8==0 and j>0:
                c=j>>3
                k.waitvm(tw[c]); e('s_barrier')
                if c>=2: pend.extend(self.wdma(c+2))
        st={}
        def kmf(j):
            n=j>>1
            if j&1 and pend: st['p']=pend.pop(0); st['p'][0]()
            self.mfma(R(AV if j&1 else AK,16),R(4*n,4,'a'),R(WF[n&1]+4*(j&1)),'0' if n==0 else None)
            if st.get('p'): st.pop('p')[1]()
        def kfill(j):
            if j&1==0: return
            c,s=j>>3,(j>>1)&3
            if c==5 and s==0:
                e('s_lshl_b32 s52, s%d, 1',sHG); e('s_and_b32 s53, s%d, 1',sTB); e('s_add_u32 s52, s52, s53'); e('s_lshl_b32 s52, s52, 6'); e('s_add_u32 s60, s52, %d',WS_ZF)
                e('v_and_b32 v46, 3, v%d',vL); e('v_lshlrev_b32 v46, 3, v46')
                e('s_lshl_b32 s61, s%d, 9',sX); e('s_add_u32 s61, s61, %d',WS_XC); e('v_and_b32 v47, 0x1f0, v%d',vL16)
                self.wsld(R(60,2),46,60,w=2); self.tz=self.wsld(R(56),47,61)
            if c==6 and s==0:
                e('s_mul_i32 s52, s%d, 6144',sTT); e('s_mul_i32 s53, s%d, 3072',sHP); e('s_add_u32 s52, s52, s53'); e('s_add_u32 s52, s52, %d',L_P0)
                e('v_add_u32 v40, s52, v%d',vL16)
                e('v_bfe_u32 v41, v%d, 2, 1',vL); e('v_lshlrev_b32 v41, 5, v41'); e('v_and_b32 v42, 0x13, v%d',vL); e('v_add_u32 v41, v41, v42')
            if c==6 and s==1:
                e('v_bfe_u32 v42, v%d, 3, 1',vL); e('v_lshl_add_u32 v41, v42, 2, v41'); e('v_lshrrev_b32 v42, 5, v%d',vL); e('v_lshl_add_u32 v41, v42, 3, v41')
                e('v_lshlrev_b32 v41, 4, v41'); e('v_add_u32 v41, s52, v41')
                e('s_lshl_b32 s53, s%d, 1',sTB); e('s_add_u32 s53, s53, s%d',sTT); e('s_and_b32 s53, s53, 31'); e('s_add_u32 s53, s53, 32')
            if c==6 and s==2:
                e('v_cmp_eq_u32 s[62:63], s53, v%d',vL); e('v_cmp_gt_u32 s[64:65], 32, v%d',vL)
                e('s_mul_i32 s52, s%d, 1536',sW); e('s_add_u32 s53, s52, %d',L_P0); e('v_lshlrev_b32 v42, 2, v%d',vL); e('v_add_u32 v43, s53, v42')
                e('v_cndmask_b32 v45, 0, v45, s[62:63]')
            if c==6 and s==3:
                e('s_and_b32 s53, s%d, 1',sTB); e('s_mul_i32 s53, s53, %d',16*3072); e('s_mul_i32 s55, s%d, 6144',sHG); e('s_add_u32 s53, s53, s55'); e('s_add_u32 s53, s53, s52'); e('s_add_u32 s55, s53, %d',WS_KV)
            if c==7 and s==0:
                for i in range(4): e('v_mov_b32 v%d, v22',144+i)
                for g in range(3): e('v_mov_b32 v%d, 0.5',128+4*g+3)
                e('v_and_b32 v23, 16, v%d',vL) if False else None
        self.pipe(64,3,kreads,kmf,kbar,kfill)
        for a,b in pend: a(); e('s_nop 0'); b()
        self.stamp('kvdone')
        e('s_mov_b32 vcc_lo, 0xffff0000'); e('s_mov_b32 vcc_hi, 0xffff0000')
        PK,PV,TM=48,32,160
        for j in range(8): e('v_cvt_pk_bf16_f32 v%d, v%d, v%d',PV+j,AV+2*j,AV+2*j+1)
        self.phi(AK,16,PK,TM)
        KVA,ZA=160,176
        self.mfma(R(KVA,16),R(PK),R(PV),'0'); self.mfma(R(ZA,16),R(144),R(PK),'0')
        self.mfma(R(KVA,16),R(PK+4),R(PV+4)); self.mfma(R(ZA,16),R(144),R(PK+4))
        Lp=k.newlabel('zp'); Lo=k.newlabel('zo')
        k.waitvm(self.tz)
        e('s_mov_b32 s%d, 0',sSPIN)
        k.label(Lp)
        e('v_cmp_ne_u64 s[52:53], v[60:61], %s',R(vN,2)); e('v_cmp_ne_u64 s[62:63], v[56:57], %s',R(vN,2)); e('s_or_b64 s[52:53], s[52:53], s[62:63]')
        e('s_cbranch_scc0 %s',Lo)
        e('s_add_u32 s%d, s%d, 1',sSPIN,sSPIN); e('s_cmp_gt_u32 s%d, %d',sSPIN,SPIN); e('s_cbranch_scc1 L_end')
        sv=(list(k.vm),k.vmdone,dict(k.pend))
        self.wsld(R(60,2),46,60,w=2); self.wsld(R(56),47,61); e('s_waitcnt vmcnt(0)'); e('s_branch %s',Lp)
        k.vm,k.vmdone,k.pend=sv
        k.label(Lo)
        e('v_cmp_ne_u32 s[52:53], s%d, v58',sLOC); e('s_cmp_eq_u64 s[52:53], 0')
        if self.opt.get('forceglobal'): e('s_cmp_eq_u32 s2, 100000')
        e('s_cselect_b32 s%d, 1, 0',sLOC)
        e('s_cselect_b32 s52, 0, 0x%x',OOB); e('s_cselect_b32 s53, 0x%x, 0',OOB)
        e('v_mov_b32 v%d, 0x%x',vFP,OOB); e('v_mov_b32 v%d, 0x%x',vFG,OOB); e('v_writelane_b32 v%d, s52, 0',vFP); e('v_writelane_b32 v%d, s53, 0',vFG)
        S=128
        for j in range(8): e('v_cndmask_b32 v%d, v%d, v%d, vcc',S+4*(j//3)+j%3,KVA+j,KVA+8+j)
        e('v_cndmask_b32 v45, v45, v%d, s[64:65]',ZA)
        for g in range(3): e('ds_write_b128 v40, %s offset:%d',R(S+4*g),1024*g)
        e('ds_write_b32 v41, v45 offset:%d',2048+8)
        k.waitvm(self.txr,k.lastlg()); e('s_barrier')
        for i in range(6): last=e('ds_read2st64_b32 %s, v43 offset0:%d offset1:%d',R(S+2*i,2),i,i+24)
        for a,b in self.wdma(10)+self.wdma(11): a(); e('s_nop 0'); b()
        k.waitvm(self.tp0st,last)
        for i in range(6): e('v_add_f32 v%d, v%d, v%d',S+2*i,S+2*i,S+2*i+1)
        for i in range(6): e('buffer_atomic_add_f32 v%d, v42, s[%d:%d], s55 offen offset:%d',S+2*i,SWS,SWS+3,256*i)
        self.stamp('atom')
        XR=240
        for q in range(4):
            if q: e('v_xor_b32 v23, %d, v19',16*q)
            e('ds_read_b64 %s, v%d',R(XR+2*q,2),23 if q else 19)
        e('ds_read_b32 v248, v44')
        QB=[32,36,24,28]
        def qreads(j):
            c,s=8+(j>>3),j&7; slot=(c%4)*16384
            for t in range(2): last=e('ds_read_b64_tr_b16 %s, v18 offset:%d',R(QB[j&3]+2*t,2),slot+(s>>2)*8192+(s&3)*2048+t*512)
            return last
        def qbar(j):
            if j==0: k.waitvm(tw[9]); e('s_barrier')
            if j==16: k.waitvm(tw[11]); e('s_barrier')
        def qfill(n):
            if n==2:
                e('s_lshl_b32 s52, s%d, 1',sHG); e('s_add_u32 s52, s52, s%d',sHP); e('s_mul_i32 s52, s52, 3072'); e('s_add_u32 s52, s52, %d',WS_KV); e('s_add_u32 s53, s52, %d',16*3072)
            if n==4:
                e('s_lshl_b32 s60, s%d, 1',sTB); e('s_add_u32 s60, s60, s%d',sTT); e('s_mul_i32 s60, s60, %d',33*1024); e('s_add_u32 s60, s60, %d',WS_O)
            if n==6:
                e('s_lshl_b32 s61, s%d, 1',sHG); e('s_add_u32 s61, s61, s%d',sHP); e('s_lshl_b32 s62, s61, 11'); e('s_add_u32 s62, s62, s60')
            if n==8:
                e('s_lshl_b32 s63, s61, 6'); e('v_lshlrev_b32 v47, 1, v%d',vL)
            if n==10:
                e('s_add_u32 s63, s63, s60'); e('s_add_u32 s63, s63, 32768')
                e('s_lshl_b32 s64, s%d, 3',sTB); e('s_add_u32 s64, s64, s%d',sHG); e('s_lshl_b32 s64, s64, 3'); e('s_add_u32 s64, s64, %d',WS_F1)
            if n==12:
                e('s_lshl_b32 s56, s%d, 17',sW); e('s_lshl_b32 s57, s%d, 7',sHG); e('s_add_u32 s56, s56, s57'); e('v_add_u32 v11, s56, v11'); e('s_lshl_b32 s57, s%d, 14',sW)
            if n==14:
                e('s_lshl_b32 s58, s%d, 2',sQ)
        self.pipe(32,3,qreads,lambda j:self.mfma(R(AQ,16),R(QB[j&3]),R(4*j,4,'a'),'0' if j==0 else None),qbar,qfill)
        self.stamp('qdone')
        PQ=48
        self.phi(AQ,16,PQ,160)
        KL=128
        e('s_mov_b32 s%d, 0',sSPIN); e('v_mov_b32 v28, 0x%x',f2u(16.0))
        Lp=k.newlabel('kvp'); k.label(Lp)
        for r in range(2):
            for g in range(3): self.wsld(R(KL+12*r+4*g),vL16,52+r,off=1024*g)
        e('s_add_u32 s%d, s%d, 1',sSPIN,sSPIN); e('s_cmp_gt_u32 s%d, %d',sSPIN,SPIN); e('s_cbranch_scc1 L_end')
        e('s_waitcnt vmcnt(0)')
        for i in range(0,6,2): e('v_min_f32 v%d, v%d, v%d',KL+4*i+3,KL+4*i+3,KL+4*i+7)
        e('v_min3_f32 v%d, v%d, v%d, v%d',KL+3,KL+3,KL+11,KL+19)
        e('v_cmp_neq_f32 vcc, v%d, v28',KL+3)
        e('s_cbranch_vccnz %s',Lp)
        self.stamp('kvok')
        def wo(i):
            e('s_add_u32 s59, s58, %d',i); e('s_and_b32 s59, s59, 15'); e('s_lshl_b32 s65, s59, 10'); e('s_add_u32 m0, s65, s57'); e('s_lshl_b32 s59, s59, 13')
            self.two=self.dma(11,SWO,59)
        self.wo=wo
        for g in range(3):
            e('v_pk_add_f32 %s, %s, %s',R(KL+4*g,2),R(KL+4*g,2),R(KL+12+4*g,2)); e('v_add_f32 v%d, v%d, v%d',KL+4*g+2,KL+4*g+2,KL+12+4*g+2)
        ZB=160
        sel=[KL+4*(j//3)+j%3 for j in range(8)]
        AA,AB,WB=56,60,36
        for j in range(4): e('v_cvt_pk_bf16_f32 v%d, v%d, v%d',AA+j,sel[2*j],sel[2*j+1])
        for j in range(8): e('v_mov_b32_dpp v%d, v%d row_newbcast:%d row_mask:0xf bank_mask:0xf',ZB+j,KL+10,j)
        for j in range(4): e('v_cvt_pk_bf16_f32 v%d, v%d, v%d',AB+j,ZB+2*j,ZB+2*j+1)
        e('s_nop 0')
        for j in range(4): e('v_permlane16_swap_b32 v%d, v%d',AA+j,AB+j)
        e('s_nop 0')
        self.mfma(R(AK,16),R(AA),R(PQ),'0'); self.mfma(R(AV,16),R(AB),R(PQ+4),'0')
        for j in range(8): e('v_mov_b32_dpp v%d, v%d row_newbcast:%d row_mask:0xf bank_mask:0xf',ZB+j,KL+10,8+j)
        for j in range(4): e('v_cvt_pk_bf16_f32 v%d, v%d, v%d',WB+j,ZB+2*j,ZB+2*j+1)
        e('v_add_f32 v28, 0x%x, v%d',f2u(1e-6),AK+8); e('v_add_f32 v30, 0x%x, v%d',f2u(1e-6),AV+8); e('v_rcp_f32 v28, v28'); e('v_rcp_f32 v30, v30')
        for h,A in enumerate((AK,AV)):
            for j in range(0,8,2): e('v_pk_mul_f32 %s, %s, %s op_sel_hi:[1,0]',R(A+j,2),R(A+j,2),R(28+2*h,2))
            for j in range(4): e('v_cvt_pk_bf16_f32 v%d, v%d, v%d',PQ+4*h+j,A+2*j,A+2*j+1)
            self.wsst(R(PQ+4*h),vL16,62,off=1024*h)
            self.mfma(R(160+16*h,16),R(WB),R(PQ+4*h),'0')
        self.stamp('ost')
        wo(0); wo(1)
        e('v_add_f32 v28, v160, v184'); e('v_cvt_pk_bf16_f32 v28, v28, v28')
        e('s_mov_b64 exec, 0xffffffff'); tst=self.wsst('v28',47,63,w=0); e('s_mov_b64 exec, -1')
        for i in range(2,self.opt.get('nwo',6)): wo(i)
        self.stamp('woiss')
        k.waitvm(tst); self.stamp('oack'); e('s_barrier')
        e('s_cmp_eq_u32 s%d, 0',sW); e('s_cselect_b32 s64, s64, 0x%x',OOB)
        self.flag2(64)
        self.stamp('oflag')
    def poll_o(self):
        k=self.k; e=k.e
        e('v_and_b32 v17, 7, v%d',vL); e('v_lshlrev_b32 v17, 3, v17'); e('s_lshl_b32 s52, s%d, 6',sTB); e('s_add_u32 s52, s52, %d',WS_F1)
        self.poll(17,52,14)
    def epoch(self):
        k=self.k; e=k.e
        e('s_cmp_eq_u32 s2, 0'); e('s_cselect_b32 s52, %d, 0x%x',WS_EPOCH,OOB)
        e('s_mov_b64 exec, 1'); self.wsst(R(vN,2),vZ,52,w=2,flags=''); e('s_mov_b64 exec, -1')
    def wgu(self,i,half):
        k=self.k; e=k.e; slot=[131072,0,32768,65536,98304,131072][i]
        def f0():
            e('s_add_u32 s66, s%d, %d',self.sWG,i*32768+half*4096); self.m0(self.sW13,slot+half*4096)
        out=[]
        for q in range(4):
            def f(q=q):
                if q==0: f0(); e('s_nop 0') if False else None
                self.tg[i]=self.dma(vL16,SWS,66,'sc1',off=1024*q)
            out.append(f)
        return out
    def p2(self):
        k=self.k; e=k.e; o=self.opt
        for i in range(o.get('nwo',6),16): self.wo(i)
        self.sWG,self.sW13,sO,sT=84,85,86,87
        e('s_lshl_b32 s66, s%d, 1',sHG); e('s_and_b32 s67, s%d, 1',sQ); e('s_add_u32 s88, s66, s67')
        e('s_mul_i32 s84, s88, %d',6*32768); e('s_lshl_b32 s85, s%d, 13',sW); e('s_add_u32 s84, s84, s85'); e('s_add_u32 s84, s84, %d',WS_WGU)
        e('s_lshl_b32 s86, s%d, 1',sTB); e('s_add_u32 s87, s86, s%d',sTT)
        e('s_mul_i32 s86, s87, %d',33*1024); e('s_lshl_b32 s66, s%d, 12',sHP); e('s_add_u32 s86, s86, s66'); e('s_add_u32 s86, s86, %d',WS_O)
        e('s_lshl_b32 s89, s%d, 15',sTT); e('s_add_u32 s90, s89, s66')
        e('s_add_u32 s89, s89, %d',L_O); e('v_add_u32 v10, s89, v%d',vL16)
        e('v_bfe_u32 v14, v%d, 2, 2',vL); e('v_lshlrev_b32 v14, 6, v14'); e('v_and_b32 v15, 3, v%d',vL); e('v_lshl_add_u32 v14, v15, 3, v14')
        e('v_bfe_u32 v15, v%d, 4, 1',vL); e('v_lshl_add_u32 v14, v15, 5, v14'); e('v_lshrrev_b32 v15, 5, v%d',vL); e('v_lshl_add_u32 v14, v15, 9, v14'); e('v_add_u32 v12, s89, v14')
        self.tg={}
        self.poll_o()
        self.stamp('o_ok')
        to={}
        for c in range(4):
            e('s_add_u32 s52, s86, %d',c*8192); self.m0(90,L_O+c*8192)
            if c==0: e('s_nop 0')
            for q in range(4): to[c]=self.dma(vL16,SWS,52,'sc1',off=1024*q)
        self.epoch()
        pend=self.wgu(0,0)+self.wgu(0,1)
        ACC=192; PB=[24,32,128,136]
        def reads(j):
            b=PB[j&3]
            e('ds_read_b128 %s, v10 offset:%d',R(b+4),j*1024)
            for t in range(2): last=e('ds_read_b64_tr_b16 %s, v13 offset:%d',R(b+2*t,2),L_WO+j*2048+t*1024)
            return last
        st={}
        def bar(j):
            if j%8==0:
                k.waitvm(to[j>>3]); e('s_barrier')
                if j==0: self.stamp('o0')
                if j==16:
                    e('s_lshl_b32 s66, s%d, 12',sHP); e('s_sub_u32 s52, s86, s66'); e('s_add_u32 s52, s52, 32768'); e('s_mov_b32 m0, s89'); e('s_nop 0')
                    st['ext']=self.dma(vL16,SWS,52,'sc1')
        def fill(j):
            if pend and j>=14 and j%2==0: pend.pop(0)()
            if j==1:
                for i in range(4): e('v_mov_b32 v%d, v22',144+i)
            if j==3: e('s_lshl_b32 s60, s87, 5'); e('s_lshl_b32 s61, s%d, 1',sHG); e('s_add_u32 s61, s61, s%d',sHP)
            if j==5: e('s_lshl_b32 s62, s61, 1'); e('s_add_u32 s60, s60, s62'); e('s_lshl_b32 s60, s60, 10'); e('s_add_u32 s60, s60, %d',WS_H)
            if j==7: e('s_lshl_b32 s62, s87, 4'); e('s_add_u32 s62, s62, s61'); e('s_lshl_b32 s63, s62, 7'); e('s_add_u32 s63, s63, %d',WS_STAT)
            if j==9: e('s_lshl_b32 s62, s62, 3'); e('s_add_u32 s62, s62, %d',WS_F2); e('v_lshlrev_b32 v47, 2, v%d',vL)
            if 11<=j<27:
                r=j-11; x=240+r//2
                if r&1: e('v_and_b32 v%d, s%d, v%d',160+r,sMASK,x)
                else: e('v_lshlrev_b32 v%d, 16, v%d',160+r,x)
        self.pipe(32,3,reads,lambda j:self.mfma(R(ACC,16),R(PB[j&3]),R(PB[j&3]+4),'0' if j==0 else None),bar,fill)
        self.stamp('p2mm')
        k.waitvm(st['ext']); e('s_barrier')
        e('ds_read_b64_tr_b16 v[24:25], v12'); t=e('ds_read_b64_tr_b16 v[26:27], v12 offset:256')
        for f in self.wgu(1,0): f()
        k.waitlg(t)
        self.mfma(R(208,16),R(144),R(24),'0')
        for j in range(0,16,2): e('v_pk_add_f32 %s, %s, %s',R(ACC+j,2),R(ACC+j,2),R(160+j,2))
        for j in range(8): e('v_cvt_pk_bf16_f32 v%d, v%d, v%d',240+j,ACC+2*j,ACC+2*j+1)
        e('v_add_f32 v28, v248, v208')
        for j in range(0,16,2): e('v_pk_add_f32 %s, %s, v[28:29] op_sel_hi:[1,0] neg_lo:[0,1] neg_hi:[0,1]',R(ACC+j,2),R(ACC+j,2))
        for j in range(8): e('v_cvt_pk_bf16_f32 v%d, v%d, v%d',128+j,ACC+2*j,ACC+2*j+1)
        self.wsst(R(128),vL16,60); self.wsst(R(132),vL16,60,off=1024)
        for j in range(8):
            d=24+(j&1)
            e('v_dot2_f32_bf16 v%d, v%d, v%d, %s',d,128+j,128+j,'0' if j<2 else 'v%d'%d)
        e('v_add_f32 v24, v24, v25'); e('v_mov_b32 v25, v24'); e('v_permlane32_swap_b32 v24, v25'); e('v_add_f32 v24, v24, v25')
        e('s_mov_b64 exec, 0xffffffff'); tst=self.wsst('v24',47,63,w=1); e('s_mov_b64 exec, -1')
        self.stamp('hst')
        for f in self.wgu(1,1)+(self.wgu(2,0) if o.get('g2',1) else []): f()
        k.waitvm(tst)
        self.flag2(62)
        self.stamp('hflag')
    def p4_consts(self):
        k=self.k; e=k.e
        e('s_mul_i32 s92, s%d, 6',sW)
        e('s_lshl_b32 s93, s%d, 2',sW); e('s_cmp_eq_u32 s%d, 3',sW); e('s_cselect_b32 s66, 1, 0'); e('s_sub_u32 s93, s93, s66'); e('s_add_u32 s93, s93, 72')
        e('s_cmp_ge_u32 s%d, 2',sW); e('s_cselect_b32 s94, 2, 3'); e('s_add_u32 s94, s94, s93')
        e('s_mul_i32 s95, s%d, %d',sHG,172*1024); e('s_add_u32 s95, s95, %d',WS_WD)
        e('s_mul_i32 s96, s%d, %d',sTB,172*1024); e('s_add_u32 s96, s96, %d',WS_A)
        for r in (92,93,94): e('s_lshl_b32 s%d, s%d, 10',r,r)
    def fragloads(self,base,regs):
        k=self.k; e=k.e; out=[]; tok={}
        for j0,n,sr,add in [(0,4,92,0),(4,2,92,4),(6,4,92,24),(10,2,92,28),(12,4,92,48),(16,2,92,52),(18,3,93,0),(21,1,94,0)]:
            for c in range(2):
                for q in range(n):
                    def f(j=j0+q,q=q,c=c,sr=sr,add=add):
                        if q==0:
                            e('s_add_u32 s67, s%d, s%d',base,sr)
                            if add or c: e('s_add_u32 s67, s67, %d',(add+86*c)*1024)
                        tok[(j,c)]=self.wsld(regs(j,c),vL16,67,off=1024*q)
                    out.append(f)
        return out,tok
    @staticmethod
    def wreg(j,c):
        n=2*j+c; return R(128+4*n,4,'a') if n<32 else R(128+4*(n-32))
    @staticmethod
    def areg(j,c):
        n=2*j+c; return R(4*n,4,'a') if n<32 else R(64+4*(n-32))
    def gelu(self,A,dst):
        e=self.k.e; out=[]; T=32
        C1,C3,IR=20,21,19
        def op(fmt,*a): out.append(lambda:e(fmt,*a))
        for h in range(2):
            js=range(4*h,4*h+4)
            for j in js: op('v_mul_f32 v%d, v%d, v%d',T+j,A+j,A+j)
            for j in js: op('v_fma_f32 v%d, v%d, v%d, v%d',T+j,T+j,C3,C1)
            for j in js: op('v_mul_f32 v%d, v%d, v%d',T+j,T+j,A+j)
            for j in js: op('v_exp_f32 v%d, v%d',T+j,T+j); op('v_mul_f32 v%d, v%d, v%d',A+j,A+j,A+8+j)
            for j in js: op('v_fma_f32 v%d, v%d, v%d, v%d',T+j,T+j,IR,IR)
            for j in js: op('v_rcp_f32 v%d, v%d',T+j,T+j)
            for j in js: op('v_mul_f32 v%d, v%d, v%d',A+j,A+j,T+j)
            for j in (4*h,4*h+2): op('v_cvt_pk_bf16_f32 v%d, v%d, v%d',dst+j//2,A+j,A+j+1)
        return out
    def p3(self):
        k=self.k; e=k.e; o=self.opt
        self.p4_consts()
        e('s_lshr_b32 s66, s%d, 1',sQ); e('s_lshl_b32 s66, s66, 2'); e('s_lshl_b32 s67, s%d, 3',sX); e('s_add_u32 s66, s66, s67'); e('s_add_u32 s87, s66, s%d',sW)
        e('s_lshl_b32 s60, s87, 15'); e('s_add_u32 s60, s60, %d',WS_H)
        e('s_lshl_b32 s61, s87, 11'); e('s_add_u32 s61, s61, %d',WS_STAT)
        e('s_lshl_b32 s62, s87, 7'); e('s_add_u32 s62, s62, %d',WS_F2)
        e('s_mul_i32 s66, s88, 6'); e('s_mul_i32 s63, s87, 86'); e('s_add_u32 s63, s63, s66'); e('s_lshl_b32 s63, s63, 10'); e('s_add_u32 s63, s63, %d',WS_A); e('s_add_u32 s65, s63, 4096')
        e('s_mul_i32 s64, s87, 96'); e('s_add_u32 s64, s64, s66'); e('s_lshl_b32 s64, s64, 3'); e('s_add_u32 s64, s64, %d',WS_F3)
        e('v_and_b32 v17, 15, v%d',vL); e('v_lshlrev_b32 v17, 3, v17'); e('v_lshlrev_b32 v16, 2, v%d',vL)
        e('v_add_u32 v10, 65536, v%d',vL16); e('v_add_u32 v11, 131072, v%d',vL16)
        wl,self.twd=self.fragloads(95,self.wreg)
        Lskip=k.newlabel('p3skip'); Lshort=k.newlabel('p3short'); Ldone=k.newlabel('p3done')
        e('s_cmp_ge_u32 s88, 15'); e('s_cbranch_scc1 %s',Lskip)
        pend=[]
        if not o.get('g2',1): pend+=self.wgu(2,0)
        for f in self.wgu(2,1): f()
        tF01=self.tg[1]
        self.poll(17,62,14)
        self.stamp('h_ok')
        th={}
        hl=[]
        for s in range(32):
            def f(s=s):
                if s%4==0: e('s_add_u32 s52, s60, %d',s*1024)
                th[s]=self.wsld(R(4*s,4,'a'),vL16,52,off=1024*(s%4))
            hl.append(f)
        sl=[(lambda m=m: th.__setitem__(('s',m),self.wsld('v%d'%(40+m),16,61,off=256*m,w=1))) for m in range(8)]
        NH=o.get('nh0',10)
        for f in hl[:NH]: f()
        pend=hl[NH:]+sl+pend+self.wgu(3,0)+self.wgu(3,1)+self.wgu(4,0)+self.wgu(4,1)
        e('s_barrier')
        ACC=[192,208,224]; WB=[24,28,48,52]
        seq=[(f,s) for s in range(32) for f in range(2)]+[(f,s) for f in range(2,6) for s in range(32)]
        slotoff=[131072,0,32768,65536,98304,131072]
        def reads(j):
            f,s=seq[j]; off=slotoff[f]+s*1024
            v,off=(vL16,off) if off<65536 else ((10,off-65536) if off<131072 else (11,off-131072))
            return e('ds_read_b128 %s, v%d offset:%d',R(WB[j&3]),v,off)
        epi=[]; st={}; tst={}
        def stats():
            out=[]
            def op(fmt,*a): out.append(lambda:e(fmt,*a))
            out.append(lambda:k.waitvm(th[('s',7)]))
            for a,b in ((40,41),(42,43),(44,45),(46,47)): pass
            op('v_add_f32 v40, v40, v41'); op('v_add_f32 v42, v42, v43'); op('v_add_f32 v44, v44, v45'); op('v_add_f32 v46, v46, v47')
            op('v_add_f32 v40, v40, v42'); op('v_add_f32 v44, v44, v46'); op('v_add_f32 v40, v40, v44'); op('v_mov_b32 v41, v40')
            op('s_nop 0'); op('v_permlane32_swap_b32 v40, v41'); op('v_add_f32 v40, v40, v41'); op('v_mul_f32 v40, 0x%x, v40',f2u(1/512.))
            op('v_cvt_pk_bf16_f32 v41, v40, v40'); op('v_lshlrev_b32 v40, 16, v41'); op('v_add_f32 v40, 0x%x, v40',f2u(1e-5))
            op('v_cvt_pk_bf16_f32 v41, v40, v40'); op('v_lshlrev_b32 v40, 16, v41'); op('v_sqrt_f32 v40, v40'); op('s_nop 0')
            op('v_cvt_pk_bf16_f32 v41, v40, v40'); op('v_lshlrev_b32 v40, 16, v41'); op('v_rcp_f32 v41, v40'); op('v_mul_f32 v19, v40, v40')
            K0=-2*0.7978845608028654*1.4426950408889634
            op('v_mul_f32 v20, 0x%x, v41',f2u(K0)); op('v_mul_f32 v41, v41, v41'); op('v_mul_f32 v41, 0x%x, v41',f2u(0.044715)); op('v_mul_f32 v21, v20, v41')
            return out
        def unit_epi(u):
            D=56+4*(u&1)
            def store(): tst[u]=self.wsst(R(D),vL16,63 if u<4 else 65,off=1024*(u&3))
            return self.gelu(ACC[u%3],D)+[store]
        def flag(u):
            def f():
                k.waitvm(tst[u]); self.flag2(64,off=8*u)
            return f
        def bar(j):
            f,s=seq[j]
            if f>=2 and s==0:
                if f==2:
                    pass
                k.waitvm(self.tg[f]); e('s_barrier')
                if f==3: pend[0:0]=self.wgu(5,0)+self.wgu(5,1)
        def mf(j):
            f,s=seq[j]
            if f<2 and j%2==0: k.waitvm(th[s])
            self.mfma(R(ACC[f%3],16),R(WB[j&3]),R(4*s,4,'a'),'0' if s==0 else None)
        sst=stats()
        def fill(j):
            if j<64:
                if pend: pend.pop(0)()
                if j>=44:
                    for _ in range(2):
                        if sst: sst.pop(0)()
            else:
                jj=j-64
                if jj==0:
                    assert not sst
                    pend.extend(wl)
                    epi.extend(unit_epi(0)+unit_epi(1)+[flag(0)])
                if jj==33: epi.extend(unit_epi(2)+[flag(1)])
                if jj==65: epi.extend(unit_epi(3)+[flag(2)])
                if jj==97: epi.extend(unit_epi(4)+[flag(3)])
                if jj%2==1 and pend: pend.pop(0)()
                n=3 if (jj<96) else 3
                if jj in (0,32,64,96): n=0
                for _ in range(n):
                    if epi: epi.pop(0)()
        tok={}
        L=3; n=len(seq)
        for j in range(L): tok[j]=reads(j)
        for j in range(n):
            k.waitlg(tok[j]); mf(j)
            if j==63-L+1-1+0 and False: pass
            if j+L<n:
                if j+L==64:
                    e('s_cmp_eq_u32 s88, 14'); e('s_cbranch_scc1 %s',Lshort)
                    snap=(list(k.vm),k.vmdone,list(k.lg),k.lgdone,dict(k.pend),list(k.hist),list(pend),list(sst),dict(tok))
                bar(j+L); tok[j+L]=reads(j+L)
            fill(j)
            if j==63: self.stamp('pair')
        self.stamp('p3mm')
        while pend: pend.pop(0)()
        while epi: epi.pop(0)()
        for f in unit_epi(5): f()
        flag(4)(); self.stamp('a5st'); flag(5)()
        self.stamp('aflag')
        e('s_branch %s',Ldone)
        main=(list(k.vm),k.vmdone,list(k.lg),k.lgdone,dict(k.pend))
        k.label(Lshort)
        k.vm,k.vmdone,k.lg,k.lgdone,k.pend,k.hist,_,sst2,tok=snap
        for f in sst2: pass
        for j in range(64-L,64):
            if j>64-L: k.waitlg(tok[j]); mf(j)
        for f in sst2: f()
        for u in range(2):
            for f in unit_epi(u): f()
        e('s_waitcnt vmcnt(0)'); self.flag2(64,off=0); self.flag2(64,off=8)
        k.label(Lskip)
        wl2,_=self.fragloads(95,self.wreg)
        k.check=False
        for f in wl2: f()
        e('s_waitcnt vmcnt(0) lgkmcnt(0)')
        k.check=True
        k.label(Ldone)
        k.vm,k.vmdone,k.lg,k.lgdone,k.pend=main
    def p4(self):
        k=self.k; e=k.e; o=self.opt
        e('v_min_u32 v14, 43, v%d',vL); e('v_cmp_le_u32 vcc, 22, v14'); e('v_subrev_u32 v15, 22, v14'); e('v_cndmask_b32 v14, v14, v15, vcc')
        e('v_cndmask_b32 v16, 0, 1, vcc')
        e('v_mul_u32_u24 v15, 43, v14'); e('v_lshrrev_b32 v15, 8, v15')
        e('v_mul_u32_u24 v17, 18, v15'); e('v_add_u32 v17, v17, v14'); e('s_lshr_b32 s52, s92, 10'); e('v_add_u32 v17, s52, v17')
        e('s_lshr_b32 s52, s93, 10'); e('s_lshr_b32 s53, s94, 10'); e('v_subrev_u32 v15, 18, v14'); e('v_add_u32 v15, s52, v15'); e('v_min_u32 v15, s53, v15')
        e('v_cmp_le_u32 vcc, 18, v14'); e('v_cndmask_b32 v17, v17, v15, vcc')
        e('v_mul_u32_u24 v16, 96, v16'); e('v_add_u32 v17, v17, v16'); e('v_lshlrev_b32 v17, 3, v17')
        e('s_mul_i32 s52, s%d, %d',sTB,2*96*8); e('s_add_u32 s52, s52, %d',WS_F3)
        ACC=[192,208,224,176]
        for r in range(16):
            x=240+r//2
            if r&1: e('v_and_b32 v%d, s%d, v%d',24+r,sMASK,x)
            else: e('v_lshlrev_b32 v%d, 16, v%d',24+r,x)
        for t in range(4):
            e('s_cmp_eq_u32 s%d, %d',sW,t); e('s_cselect_b32 s53, -1, 0')
            for r in range(16): e('v_and_b32 v%d, s53, v%d',ACC[t]+r,24+r)
        e('v_and_b32 v14, 31, v%d',vL); e('v_mul_u32_u24 v14, 272, v14'); e('v_lshrrev_b32 v15, 5, v%d',vL); e('v_lshl_add_u32 v18, v15, 4, v14'); e('s_mul_i32 s53, s%d, 17408',sW); e('v_add_u32 v18, s53, v18')
        e('v_lshrrev_b32 v14, 3, v%d',vL); e('v_and_b32 v15, 7, v%d',vL); e('v_mul_u32_u24 v19, 272, v14'); e('v_lshl_add_u32 v19, v15, 5, v19'); e('s_mul_i32 s53, s%d, %d',sW,16*272); e('v_add_u32 v19, s53, v19')
        e('v_lshlrev_b32 v20, 10, v14'); e('v_lshl_add_u32 v20, v15, 4, v20')
        e('s_lshl_b32 s60, s%d, 2',sTB); e('s_add_u32 s60, s60, s%d',sW); e('s_lshl_b32 s60, s60, 14'); e('s_lshl_b32 s53, s%d, 7',sHG); e('s_add_u32 s60, s60, s53'); e('s_add_u32 s61, s60, 8192')
        self.poll(17,52,14)
        self.stamp('a_ok')
        al,ta=self.fragloads(96,self.areg)
        NA=o.get('na0',10)
        for f in al[:NA]: f()
        pend=al[NA:]
        Ls=k.newlabel('p4s')
        for j in range(22):
            if j==21:
                while pend: pend.pop(0)()
                e('s_cmp_ge_u32 s%d, 2',sW); e('s_cbranch_scc1 %s',Ls)
            for tt in range(2):
                while (j,tt) not in ta: pend.pop(0)()
                k.waitvm(ta[(j,tt)])
                for ct in range(2):
                    self.mfma(R(ACC[tt+2*ct],16),self.wreg(j,ct),self.areg(j,tt))
                    if pend and ct==0: pend.pop(0)()
        k.label(Ls)
        self.stamp('p4mm')
        for tt in range(2):
            for ct in range(2):
                for q in range(4): last=e('ds_write_b128 v18, %s offset:%d',R(ACC[tt+2*ct]+4*q),tt*32*272+ct*128+q*32)
        k.waitlg(last); e('s_barrier')
        for r in range(2):
            for p in range(4):
                for h in range(2): last=e('ds_read_b128 %s, v19 offset:%d',R(64+32*r+8*p+4*h),p*17408+r*8*272+h*16)
            self.tl=getattr(self,'tl',{}); self.tl[r]=last
        for r in range(2):
            k.waitlg(self.tl[r]); B=64+32*r
            for j in range(0,8,2):
                e('v_pk_add_f32 %s, %s, %s',R(B+j,2),R(B+j,2),R(B+8+j,2)); e('v_pk_add_f32 %s, %s, %s',R(B+16+j,2),R(B+16+j,2),R(B+24+j,2))
            for j in range(0,8,2): e('v_pk_add_f32 %s, %s, %s',R(B+j,2),R(B+j,2),R(B+16+j,2))
            for j in range(4): e('v_cvt_pk_bf16_f32 v%d, v%d, v%d',B+8+j,B+2*j,B+2*j+1)
            e('buffer_store_dwordx4 %s, v20, s[%d:%d], s%d offen',R(B+8),SO,SO+3,60+r)
def report(g,s):
    print('nops',g.k.nops,'lines',len(s.split('\n')))
    import collections
    c=collections.Counter()
    for n,p,t in g.k.noplog: c[(p.split()[0],t.split()[0])]+=n
    print(c.most_common(20))
if __name__=='__main__':
    stop=sys.argv[1] if len(sys.argv)>1 else None
    if stop=='all': stop=None
    g=G(stamps=True,stop=stop); s=g.build(); open('k_t.s','w').write(s); report(g,s)
    import harness, cdna_launch as CL
    harness.build('k_t.s'); print(CL.address_register_problem('k_t.co', KN))
```
